```python
import torch

def _softmax(x, axis=-1):
    return torch.softmax(x, dim=axis)
def _gelu(x):
    return torch.nn.functional.gelu(x, approximate="tanh")
def _silu(x):
    return torch.nn.functional.silu(x)
def _sigmoid(x):
    return torch.sigmoid(x)
def _layernorm(x, axis=-1, eps=1e-5):
    m = x.mean(dim=axis, keepdim=True)
    v = x.var(dim=axis, keepdim=True, unbiased=False)
    return (x - m) / torch.sqrt(v + eps)
def _scatter_add(tgt, idx, src, axis=0):
    return tgt.clone().index_add_(axis, idx, src)
def _segment_sum(src, seg, n):
    out = torch.zeros((n,) + src.shape[1:], dtype=src.dtype)
    return out.index_add_(0, seg, src)
def _pad(x, pw):
    flat = tuple(v for pair in reversed(pw) for v in pair)
    return torch.nn.functional.pad(x, flat)

kernel_name = 'parallel_sum__mha_block__glu_gated_swiglu__prompt'

def setup_inputs():

    _w = (lambda a: (lambda t: t.to(torch.bfloat16) if t.is_floating_point() else t)(torch.as_tensor(a)))
    def _A_setup():
        B, S, D, H = 1, 2048, 1024, 32
        return {
            "x": _w((lambda *s: torch.randn(*s, dtype=torch.bfloat16) * 0.05)(B, S, D)),
            "wqkv": _w((lambda *s: torch.randn(*s, dtype=torch.bfloat16) * 0.05)(D, 3 * D)),
            "wo": _w((lambda *s: torch.randn(*s, dtype=torch.bfloat16) * 0.05)(D, D)),
        }
    _A_in = _A_setup()

    def _B_setup():
        B, S, D, F = 1, 2048, 1024, 3584
        return {
            "x": _w((lambda *s: torch.randn(*s, dtype=torch.bfloat16) * 0.05)(B, S, D)),
            "w1": _w((lambda *s: torch.randn(*s, dtype=torch.bfloat16) * 0.8)(D, F) * (2.0 / D) ** 0.5),
            "w3": _w((lambda *s: torch.randn(*s, dtype=torch.bfloat16) * 0.8)(D, F) * (2.0 / D) ** 0.5),
            "w2": _w((lambda *s: torch.randn(*s, dtype=torch.bfloat16) * 0.8)(F, D) * (2.0 / F) ** 0.5),
        }
    _B_in = _B_setup()

    return {
        "A_x": _A_in["x"],
        "A_wqkv": _A_in["wqkv"],
        "A_wo": _A_in["wo"],
        "B_x": _B_in["x"],
        "B_w1": _B_in["w1"],
        "B_w3": _B_in["w3"],
        "B_w2": _B_in["w2"],
    }

def reference(A_x, A_wqkv, A_wo, B_x, B_w1, B_w3, B_w2):
    def _A_ref(x, wqkv, wo):
        B, S, D = x.shape
        H = 32
        Dh = D // H
        qkv = (lambda x, *d: x.permute(*d))((x @ wqkv).reshape(B, S, 3, H, Dh), 2, 0, 3, 1, 4)
        q, k, v = qkv[0], qkv[1], qkv[2]
        scores = torch.einsum("bhqd,bhkd->bhqk", q, k) * (Dh ** -0.5)
        p = _softmax(scores, axis=-1)
        o = torch.einsum("bhqk,bhkd->bhqd", p, v)
        return (lambda x, *d: x.permute(*d))(o, 0, 2, 1, 3).reshape(B, S, D) @ wo

    def _B_ref(x, w1, w3, w2):
        gate = torch.einsum("bsd,df->bsf", x, w1)
        up = torch.einsum("bsd,df->bsf", x, w3)
        h = _silu(gate) * up
        out = torch.einsum("bsf,fd->bsd", h, w2)
        return out

    x = A_x
    xn = _layernorm(x, axis=-1)
    return x + _A_ref(xn, A_wqkv, A_wo) + _B_ref(xn, B_w1, B_w3, B_w2)
```

```python
import re
TRANS = ("v_exp_f32", "v_rcp_f32", "v_rsq_f32", "v_sqrt_f32", "v_log_f32")
REG = re.compile(r"^(-|\|)?([vas])(\d+)\|?$")
RNG = re.compile(r"^(-|\|)?([vas])\[(\d+):(\d+)\]\|?$")

def regs_of(tok):
    tok = tok.strip()
    m = REG.match(tok)
    if m: return [(m.group(2), int(m.group(3)))]
    m = RNG.match(tok)
    if m: return [(m.group(2), i) for i in range(int(m.group(3)), int(m.group(4)) + 1)]
    if tok == "vcc": return [("s", 106), ("s", 107)]
    if tok == "exec": return [("s", 126), ("s", 127)]
    if tok == "m0": return [("s", 124)]
    return []

class Ins:
    def __init__(self, text):
        self.text = text
        t = text.split(";")[0].strip()
        self.label = t.endswith(":")
        self.op = t.split()[0] if t else ""
        rest = t[len(self.op):].strip()
        toks = [x.strip() for x in rest.split(",")] if rest else []
        ops = []
        self.mods = ""
        for i, x in enumerate(toks):
            parts = x.split()
            if not parts: continue
            ops.append(parts[0])
            if len(parts) > 1: self.mods += " " + " ".join(parts[1:])
        self.ops = ops
        op = self.op
        self.dst, self.src = [], []
        self.kind = "other"
        R = [regs_of(o) for o in ops]
        if self.label or not op or op.startswith("."):
            self.kind = "label"
        elif op.startswith("v_mfma"):
            self.kind = "mfma"
            self.passes = 8 if "32x32" in op else 4
            self.dst = R[0]; self.A = R[1]; self.B = R[2]; self.C = R[3]
            self.src = R[1] + R[2] + R[3]
        elif op.startswith("v_"):
            self.kind = "valu"
            base = op.replace("_e32", "").replace("_e64", "").replace("_dpp", "")
            self.trans = base in TRANS
            self.dpp = ("quad_perm" in self.mods or "row_" in self.mods)
            self.dot = base.startswith("v_dot")
            if "swap" in op:
                self.dst = R[0] + R[1]; self.src = R[0] + R[1]
            elif base.startswith("v_cmpx"):
                self.dst = R[0] + regs_of("exec"); self.src = sum(R[1:], [])
            elif "_co_" in base:
                self.dst = R[0] + R[1]; self.src = sum(R[2:], [])
            else:
                self.dst = R[0]; self.src = sum(R[1:], [])
                if base.startswith(("v_fmac", "v_dot2c", "v_pk_fmac", "v_mac")): self.src += R[0]
                if self.dpp: self.src += R[0]
                if base.startswith("v_cndmask") and len(ops) == 3: self.src += regs_of("vcc")
            if op == "v_nop": self.kind = "other"
        elif op.startswith("ds_read") or op.startswith("ds_bpermute") or op.startswith("ds_swizzle"):
            self.kind = "dsr"; self.dst = R[0]; self.src = sum(R[1:], [])
        elif op.startswith("ds_write"):
            self.kind = "dsw"; self.src = sum(R, [])
        elif op.startswith("buffer_load") or op.startswith("global_load"):
            if " lds" in self.mods or "_lds_" in op:
                self.kind = "dma"; self.src = sum(R, []) + regs_of("m0")
            else:
                self.kind = "vld"; self.dst = R[0]; self.src = sum(R[1:], [])
        elif op.startswith("buffer_store") or op.startswith("global_store") or op.startswith("buffer_atomic"):
            self.kind = "vst"; self.src = sum(R, [])
            self.data = R[0] if op.startswith("buffer") else R[1]
            self.wide = op.endswith("x4") or op.endswith("x3")
        elif op.startswith("s_"):
            self.kind = "salu"
            if op.startswith(("s_cmp", "s_waitcnt", "s_branch", "s_cbranch", "s_barrier", "s_nop", "s_endpgm", "s_setprio", "s_sleep", "s_bitcmp")):
                self.src = sum(R, [])
            elif op.startswith("s_load"):
                self.kind = "smem"; self.dst = R[0]; self.src = sum(R[1:], [])
            else:
                self.dst = R[0]; self.src = sum(R[1:], [])
                if "saveexec" in op: self.dst = self.dst + regs_of("exec")
        self.need_lgkm = None
        self.need_nop = 0

class St:
    def __init__(self):
        self.t = 0
        self.q = []
        self.w = {}
        self.cread = {}
        self.sdata = {}
    def copy(self):
        s = St(); s.t = self.t; s.q = [set(x) for x in self.q]; s.w = dict(self.w); s.cread = dict(self.cread); s.sdata = dict(self.sdata)
        return s

class Prog:
    def __init__(self):
        self.ins = []
    def __call__(self, text):
        for line in text.split("\n"):
            line = line.strip()
            if line: self.ins.append(Ins(line))
    def sim(self, a, b, st):
        changed = False
        for i in range(a, b):
            I = self.ins[i]
            k = I.kind
            if k == "label": continue
            touched = set(I.src) | set(I.dst)
            need = None
            for pos, d in enumerate(st.q):
                if d & touched: need = len(st.q) - 1 - pos
            if need is not None:
                need = min(need, 15)
                if I.need_lgkm is None or need < I.need_lgkm:
                    I.need_lgkm = need; changed = True
            if I.need_lgkm is not None:
                n = I.need_lgkm
                if len(st.q) > n: st.q = st.q[len(st.q) - n:] if n > 0 else []
                st.t += 1
            if I.op == "s_waitcnt":
                m = re.search(r"lgkmcnt\((\d+)\)", I.text)
                if m:
                    n = int(m.group(1))
                    if len(st.q) > n: st.q = st.q[len(st.q) - n:] if n > 0 else []
            req = 0
            def dist(tm): return st.t - tm - 1
            def need_ws(tm, ws):
                nonlocal req
                req = max(req, ws - dist(tm))
            for r in I.src:
                if r not in st.w: continue
                tm, kind = st.w[r]
                if kind in ("valu", "trans", "dot"):
                    if k == "mfma": need_ws(tm, 3 if kind == "dot" else 2)
                    if k == "valu":
                        if kind == "trans" and not I.trans: need_ws(tm, 1)
                        if kind == "dot": need_ws(tm, 3)
                        if I.dpp or "permlane" in I.op: need_ws(tm, 2)
                        if I.op.startswith(("v_readfirstlane", "v_readlane")): need_ws(tm, 1)
                        if r[0] == "s": need_ws(tm, 2)
                    if r[0] == "s" and k in ("dma", "vld", "vst"): need_ws(tm, 5)
                    if kind == "dot" and k in ("dsw", "vst", "dsr", "vld"): need_ws(tm, 3)
                    if r[0] == "s" and k == "salu": need_ws(tm, 1)
                elif kind in ("mfma4", "mfma8"):
                    p = 4 if kind == "mfma4" else 8
                    if k == "mfma":
                        if r in I.A or r in I.B: need_ws(tm, p + 4)
                        elif r in I.C:
                            if not (st.w.get(("D", r)) == (tuple(I.C), tm) and I.passes == p): need_ws(tm, p + 2)
                    else: need_ws(tm, p + 4)
                elif kind == "salu":
                    if r == ("s", 124) and k == "dma": need_ws(tm, 1)
            for r in I.dst:
                if r in st.w:
                    tm, kind = st.w[r]
                    if kind in ("mfma4", "mfma8"):
                        p = 4 if kind == "mfma4" else 8
                        if k == "mfma":
                            if r not in I.C: need_ws(tm, p + 2)
                        else: need_ws(tm, p + 4)
                    if kind == "dot" and k != "mfma": need_ws(tm, 3)
                if r in st.cread and k in ("valu", "dsr", "vld"):
                    tm, p = st.cread[r]; need_ws(tm, p - 1)
                if r in st.sdata: need_ws(st.sdata[r], 2)
            if k == "mfma" and ("s", 126) in st.w and st.w[("s", 126)][1] == "valu": need_ws(st.w[("s", 126)][0], 4)
            if k == "valu" and (I.dpp or "permlane" in I.op or "readfirstlane" in I.op) and ("s", 126) in st.w and st.w[("s", 126)][1] == "valu": need_ws(st.w[("s", 126)][0], 5)
            if req > I.need_nop: I.need_nop = req; changed = True
            st.t += I.need_nop
            now = st.t
            if k == "mfma":
                for r in I.dst:
                    st.w[r] = (now, "mfma%d" % I.passes); st.w[("D", r)] = (tuple(I.dst), now)
                for r in I.C: st.cread[r] = (now, I.passes)
            elif k == "valu":
                kd = "trans" if I.trans else ("dot" if I.dot else "valu")
                for r in I.dst: st.w[r] = (now, kd)
            elif k == "salu":
                for r in I.dst: st.w[r] = (now, "salu")
            elif k == "dsr":
                st.q.append(set(I.dst))
                for r in I.dst: st.w.pop(r, None)
            elif k == "dsw":
                st.q.append(set())
            elif k == "smem":
                st.q.append(set(I.dst) | {("smem", 0)})
            elif k == "vld":
                for r in I.dst: st.w.pop(r, None)
            elif k == "vst":
                if I.wide:
                    for r in I.data: st.sdata[r] = now
            if I.op == "s_nop": st.t += int(I.ops[0], 0) + 1
            else: st.t += 1
        return st, changed
    def finalize(self):
        labels = {I.text.split(":")[0].strip(): i for i, I in enumerate(self.ins) if I.label}
        for _ in range(6):
            changed = False
            st = St(); pos = 0
            for i, I in enumerate(self.ins):
                if I.op.startswith(("s_cbranch", "s_branch")) and I.ops[0] in labels and labels[I.ops[0]] < i:
                    L = labels[I.ops[0]]
                    st, c = self.sim(pos, i + 1, st); changed |= c
                    st2, c = self.sim(L, i + 1, st.copy()); changed |= c
                    st = st2; pos = i + 1
                elif I.op == "s_endpgm":
                    st, c = self.sim(pos, i + 1, st); changed |= c
                    st = St(); pos = i + 1
            st, c = self.sim(pos, len(self.ins), st); changed |= c
            if not changed: break
        out = []
        for I in self.ins:
            if I.need_lgkm is not None: out.append("    s_waitcnt lgkmcnt(%d)" % I.need_lgkm)
            n = I.need_nop
            while n > 0:
                c = min(n, 16); out.append("    s_nop %d" % (c - 1)); n -= c
            out.append(I.text if (I.label or I.op.startswith(".")) else "    " + I.text)
        return "\n".join(out) + "\n"
```

```python
import sys, os
sys.path.insert(0, "dev")
from asmlib import Prog
from gen import *

ASTG = 32768
NRING = 3
def gen_attn():
    p = Prog(); n = "attn_kernel"; header(p, n)
    S = [0, 16]
    NM = [32, 48]
    O = [64, 80]
    P = [96, 104]
    KF = [112, 120]
    VF = [128, 136]
    L = [144, 148]
    Q = [152, 160]
    SEL = 168
    VD = 172
    AK, AV0, AV1 = 176, 177, 178
    BK, BV0, BV1 = 179, 180, 181
    NK = 182
    T = 184
    def r(b, k=4): return f"v[{b}:{b+k-1}]"
    p(f"""s_cmp_ge_u32 s2, 256
s_cbranch_scc1 {n}_end""")
    stamp(p, 0)
    p(f"""s_load_dwordx2 s[34:35], s[0:1], 72
v_lshrrev_b32 v{T}, 6, v0
v_and_b32 v{T+1}, 63, v0
v_readfirstlane_b32 s20, v{T}
s_and_b32 s21, s2, 7
s_lshl_b32 s21, s21, 2
s_lshr_b32 s3, s2, 3
s_and_b32 s3, s3, 3
s_add_u32 s21, s21, s3
s_lshr_b32 s22, s2, 5
s_and_b32 s23, s20, 3
s_lshr_b32 s24, s20, 2
s_mov_b32 s40, 0
s_waitcnt lgkmcnt(0)""")
    srd(p, 4, "s34", "s35", hex(WS_BYTES))
    LN_ = T + 1
    p(f"""v_lshlrev_b32 v{VD}, 4, v{LN_}
v_lshrrev_b32 v{T+2}, 4, v{LN_}
v_lshlrev_b32 v{T+3}, 2, v{T+2}
v_xor_b32 v{T+3}, v{T+3}, v{LN_}
v_lshlrev_b32 v{VD+1}, 4, v{T+3}
v_add_u32 v{VD+1}, {32*131072}, v{VD+1}
s_add_u32 s25, s21, 32
s_lshl_b32 s25, s25, 17
s_add_u32 s25, s25, {QKV_OFF}
s_lshl_b32 s26, s24, 16
s_add_u32 s25, s25, s26
s_lshl_b32 s26, s23, 11
s_add_u32 s25, s25, s26
s_lshl_b32 s27, s24, 14
s_add_u32 s27, s27, s26""")
    def dma_stage(slot_sgpr):
        for kv in range(2):
            p(f"s_add_u32 s3, s27, {slot_sgpr}")
            p(f"s_add_u32 m0, s3, {kv*8192}")
            p(f"buffer_load_dwordx4 v{VD+kv}, s[4:7], s28 offen lds")
            p(f"buffer_load_dwordx4 v{VD+kv}, s[4:7], s28 offen offset:1024 lds")
        p("s_add_u32 s28, s28, 8192")
    p(f"""v_bfe_u32 v{T+2}, v{LN_}, 4, 1
v_lshrrev_b32 v{T+3}, 5, v{LN_}
v_and_b32 v{T+4}, 15, v{LN_}
v_lshlrev_b32 v{BK}, 10, v{T+2}
v_lshl_add_u32 v{BK}, v{T+3}, 8, v{BK}
v_lshl_add_u32 v{BK}, v{T+4}, 4, v{BK}
v_mov_b32 v{T+10}, v{BK}
s_lshl_b32 s26, s24, 14
v_add_u32 v{BK}, s26, v{BK}""")
    p(f"""v_and_b32 v{T+5}, 3, v{LN_}
v_bfe_u32 v{T+6}, v{LN_}, 2, 2
v_xor_b32 v{T+7}, v{T+3}, v{T+5}
v_lshl_add_u32 v{T+7}, v{T+7}, 2, v{T+6}
v_lshlrev_b32 v{BV0}, 8, v{T+5}
v_lshl_add_u32 v{BV0}, v{T+7}, 4, v{BV0}
v_lshl_add_u32 v{BV0}, v{T+2}, 3, v{BV0}
s_add_u32 s26, s26, 8192
v_add_u32 v{BV0}, s26, v{BV0}
v_xor_b32 v{BV1}, 128, v{BV0}""")
    p(f"""s_lshl_b32 s26, s21, 17
s_add_u32 s26, s26, {QKV_OFF}
s_lshl_b32 s3, s22, 14
s_add_u32 s26, s26, s3
s_lshl_b32 s3, s23, 12
s_add_u32 s26, s26, s3""")
    for b in range(2):
        for x in range(2):
            p(f"buffer_load_dwordx4 {r(Q[b]+4*x)}, v{T+10}, s[4:7], s26 offen offset:{b*2048+x*512}")
    p(f"""v_bfe_u32 v{T+5}, v{LN_}, 2, 1
v_cmp_eq_u32 vcc, v{T+5}, v{T+2}
v_mov_b32 v{T+6}, 0x3f803f80
v_cndmask_b32 v{SEL}, 0, v{T+6}, vcc
v_mov_b32 v{SEL+1}, v{SEL}
v_mov_b32 v{SEL+2}, v{SEL}
v_mov_b32 v{SEL+3}, v{SEL}""")
    p(f"{n}_start:")
    p("s_mov_b32 s28, s25")
    p("s_mov_b32 s30, 0")
    dma_stage("s30")
    p(f"s_mov_b32 s30, {ASTG}")
    dma_stage("s30")
    for b in range(2):
        for e in range(16): p(f"v_mov_b32 v{O[b]+e}, 0")
        for e in range(4): p(f"v_mov_b32 v{L[b]+e}, 0")
        for e in range(8): p(f"v_mov_b32 v{P[b]+e}, 0")
    for e in range(8): p(f"v_mov_b32 v{VF[1]+e}, 0")
    p("s_waitcnt vmcnt(4)")
    p("s_barrier")
    stamp(p, 1)
    p(f"""s_cmp_lg_u32 s40, 0
s_cbranch_scc1 {n}_havemax""")
    p(f"ds_read_b128 {r(KF[0])}, v{T+10}")
    p(f"ds_read_b128 {r(KF[0]+4)}, v{T+10} offset:512")
    for b in range(2):
        p(f"v_mfma_f32_32x32x16_bf16 {r(S[b],16)}, {r(KF[0])}, {r(Q[b])}, 0")
        p(f"v_mfma_f32_32x32x16_bf16 {r(S[b],16)}, {r(KF[0]+4)}, {r(Q[b]+4)}, {r(S[b],16)}")
    for b in range(2):
        t = T + 2 + 2 * b
        p(f"v_max3_f32 v{t}, v{S[b]}, v{S[b]+1}, v{S[b]+2}")
        for e in range(3, 15, 2): p(f"v_max3_f32 v{t}, v{t}, v{S[b]+e}, v{S[b]+e+1}")
        p(f"v_max_f32 v{t}, v{t}, v{S[b]+15}")
        p(f"v_mov_b32 v{t+1}, v{t}")
        p(f"v_permlane32_swap_b32 v{t}, v{t+1}")
        p(f"v_max_f32 v{t}, v{t}, v{t+1}")
        for e in range(16): p(f"v_sub_f32 v{NM[b]+e}, 0, v{t}")
    p(f"{n}_havemax:")
    p("s_nop 7")
    def rdk(buf, areg, kblk):
        p(f"ds_read_b128 {r(KF[buf])}, v{areg} offset:{kblk*2048}")
        p(f"ds_read_b128 {r(KF[buf]+4)}, v{areg} offset:{kblk*2048+512}")
    def rdv(buf, kblk):
        for x in range(2):
            p(f"ds_read_b64_tr_b16 {r(VF[buf]+4*x,2)}, v{AV0} offset:{kblk*2048+x*1024}")
            p(f"ds_read_b64_tr_b16 {r(VF[buf]+4*x+2,2)}, v{AV1} offset:{kblk*2048+x*1024}")
    def qk(b, buf, x):
        c = r(NM[b], 16) if x == 0 else r(S[b], 16)
        p(f"v_mfma_f32_32x32x16_bf16 {r(S[b],16)}, {r(KF[buf]+4*x)}, {r(Q[b]+4*x)}, {c}")
    def pv(b, buf, x):
        p(f"v_mfma_f32_32x32x16_bf16 {r(O[b],16)}, {r(VF[buf]+4*x)}, {r(P[b]+4*x)}, {r(O[b],16)}")
    def sm(b, x):
        p(f"v_mfma_f32_16x16x32_bf16 {r(L[b])}, {r(SEL)}, {r(P[b]+4*x)}, {r(L[b])}")
    def ex(b, x, part):
        base = S[b] + 8 * x + 4 * part
        for e in range(4): p(f"v_exp_f32 v{base+e}, v{base+e}")
    def cv(b, x, part):
        base = S[b] + 8 * x + 4 * part
        for e in range(2): p(f"v_cvt_pk_bf16_f32 v{P[b]+4*x+2*part+e}, v{base+2*e}, v{base+2*e+1}")
    rdk(0, BK, 0)
    qk(0, 0, 0); qk(0, 0, 1)
    p(f"""s_mov_b32 s29, 0
s_mov_b32 s30, {ASTG}
s_mov_b32 s31, {2*ASTG}
s_mov_b32 s33, 8""")
    p(f"{n}_loop:")
    p("s_waitcnt vmcnt(0)")
    p("s_barrier")
    p(f"""v_add_u32 v{AK}, s29, v{BK}
v_add_u32 v{AV0}, s29, v{BV0}
v_add_u32 v{AV1}, s29, v{BV1}
v_add_u32 v{NK}, s30, v{BK}
s_cmp_le_u32 s33, 2
s_cbranch_scc1 {n}_nodma""")
    dma_stage("s31")
    p(f"{n}_nodma:")
    for kb in range(4):
        cur, nxt = kb & 1, (kb & 1) ^ 1
        rdv(cur, kb)
        for x in range(2):
            qk(1, cur, x)
            ex(0, x, 0)
            pv(1, nxt, x)
            ex(0, x, 1)
            cv(0, x, 0)
            sm(1, x)
            cv(0, x, 1)
            if x == 0:
                if kb < 3: rdk(nxt, AK, kb + 1)
                else: rdk(nxt, NK, 0)
        for x in range(2):
            qk(0, nxt, x)
            ex(1, x, 0)
            pv(0, cur, x)
            ex(1, x, 1)
            cv(1, x, 0)
            sm(0, x)
            cv(1, x, 1)
    p(f"""s_mov_b32 s3, s29
s_mov_b32 s29, s30
s_mov_b32 s30, s31
s_mov_b32 s31, s3
s_sub_u32 s33, s33, 1
s_cmp_lg_u32 s33, 0
s_cbranch_scc1 {n}_loop""")
    for x in range(2):
        pv(1, 1, x)
        sm(1, x)
    stamp(p, 2)
    p("s_barrier")
    p(f"""s_mul_i32 s26, s20, 4608
v_lshlrev_b32 v{T+2}, 4, v{LN_}
v_add_u32 v{T+2}, s26, v{T+2}
v_lshlrev_b32 v{T+3}, 2, v{LN_}
v_add_u32 v{T+3}, s26, v{T+3}
s_xor_b32 s3, s20, 4
s_mul_i32 s26, s3, 4608
v_lshlrev_b32 v{T+4}, 4, v{LN_}
v_add_u32 v{T+4}, s26, v{T+4}
v_lshlrev_b32 v{T+5}, 2, v{LN_}
v_add_u32 v{T+5}, s26, v{T+5}
s_nop 7
v_max_f32 v{T+6}, v{L[0]}, v{L[1]}
v_mov_b32 v{T+7}, {hx(2.0**60)}
v_cmp_nlt_f32 vcc, v{L[0]}, v{T+7}
s_mov_b64 s[36:37], vcc
v_cmp_nlt_f32 vcc, v{L[1]}, v{T+7}
s_or_b64 s[36:37], s[36:37], vcc
s_cmp_lg_u64 s[36:37], 0
s_cselect_b32 s38, 1, 0
v_mov_b32 v{T+6}, s38
s_lshl_b32 s3, s20, 2
s_add_u32 s3, s3, 40960
v_mov_b32 v{T+7}, s3
ds_write_b32 v{T+7}, v{T+6}
s_cmp_lg_u32 s24, 0
s_cbranch_scc1 {n}_h1""")
    def fin(mine, other):
        for e in range(4): p(f"ds_write_b128 v{T+2}, {r(O[other]+4*e)} offset:{e*1024}")
        p(f"ds_write_b32 v{T+3}, v{L[other]} offset:4096")
        p("s_waitcnt lgkmcnt(0)")
        p("s_barrier")
        p(f"v_mov_b32 v{T+7}, 40960")
        p(f"ds_read_b128 {r(T+8)}, v{T+7}")
        p(f"ds_read_b128 {r(T+12)}, v{T+7} offset:16")
        for e in range(4): p(f"ds_read_b128 {r(S[0]+4*e)}, v{T+4} offset:{e*1024}")
        p(f"ds_read_b32 v{S[1]}, v{T+5} offset:4096")
        p(f"v_or3_b32 v{T+8}, v{T+8}, v{T+9}, v{T+10}".replace(f"v{T+10}", f"v{T+10}"))
        return
    def fin(mine, other):
        F = T + 12
        for e in range(4): p(f"ds_write_b128 v{T+2}, {r(O[other]+4*e)} offset:{e*1024}")
        p(f"ds_write_b32 v{T+3}, v{L[other]} offset:4096")
        p("s_waitcnt lgkmcnt(0)")
        p("s_barrier")
        p(f"v_mov_b32 v{T+7}, 40960")
        p(f"ds_read_b128 {r(F)}, v{T+7}")
        p(f"ds_read_b128 {r(F+4)}, v{T+7} offset:16")
        for e in range(4): p(f"ds_read_b128 {r(S[0]+4*e)}, v{T+4} offset:{e*1024}")
        p(f"ds_read_b32 v{S[1]}, v{T+5} offset:4096")
        p(f"""v_or3_b32 v{F}, v{F}, v{F+1}, v{F+2}
v_or3_b32 v{F}, v{F}, v{F+3}, v{F+4}
v_or3_b32 v{F}, v{F}, v{F+5}, v{F+6}
v_or_b32 v{F}, v{F}, v{F+7}
v_readfirstlane_b32 s38, v{F}
s_andn2_b32 s38, s38, s40
s_cmp_lg_u32 s38, 0
s_waitcnt lgkmcnt(0)
s_cbranch_scc1 {n}_fallback""")
        p(f"v_add_f32 v{S[1]}, v{S[1]}, v{L[mine]}")
        p(f"v_rcp_f32 v{S[1]}, v{S[1]}")
        for e in range(16): p(f"v_add_f32 v{S[0]+e}, v{S[0]+e}, v{O[mine]+e}")
        for e in range(16): p(f"v_mul_f32 v{S[0]+e}, v{S[0]+e}, v{S[1]}")
        for u in range(2):
            for k2, b in enumerate((4 * u, 4 * u + 2, 8 + 4 * u, 8 + 4 * u + 2)):
                p(f"v_cvt_pk_bf16_f32 v{P[0]+4*u+k2}, v{S[0]+b}, v{S[0]+b+1}")
        p(f"""v_bfe_u32 v{F}, v{LN_}, 4, 1
v_mul_u32_u24 v{F}, {ACT_T}, v{F}
v_lshrrev_b32 v{F+1}, 5, v{LN_}
v_lshl_add_u32 v{F}, v{F+1}, 8, v{F}
v_and_b32 v{F+1}, 15, v{LN_}
v_lshl_add_u32 v{F}, v{F+1}, 4, v{F}
s_lshl_b32 s3, s22, 4
s_lshl_b32 s26, s23, 2
s_add_u32 s3, s3, s26
s_add_u32 s3, s3, {2*mine}
s_mul_i32 s3, s3, {ACT_T}
s_lshl_b32 s26, s21, 10
s_add_u32 s3, s3, s26
s_add_u32 s3, s3, {ACT_OFF}
buffer_store_dwordx4 {r(P[0])}, v{F}, s[4:7], s3 offen
buffer_store_dwordx4 {r(P[0]+4)}, v{F}, s[4:7], s3 offen offset:512""")
        stamp(p, 3)
        stamp_out(p, 4, 0, "s20", int(os.environ.get("DSTRIDE", "32")))
        p("s_endpgm")
    fin(0, 1)
    p(f"{n}_h1:")
    fin(1, 0)
    p(f"{n}_fallback:")
    M = T + 2
    p(f"""s_mov_b32 s40, 1
s_barrier
v_mov_b32 v{M}, 0xff800000
v_mov_b32 v{M+1}, 0xff800000
s_add_u32 s28, s21, 32
s_lshl_b32 s28, s28, 17
s_add_u32 s28, s28, {QKV_OFF}
s_lshl_b32 s3, s24, 16
s_add_u32 s28, s28, s3
s_mov_b32 s33, 32""")
    p(f"{n}_fbloop:")
    p(f"buffer_load_dwordx4 {r(KF[0])}, v{T+10}, s[4:7], s28 offen")
    p(f"buffer_load_dwordx4 {r(KF[0]+4)}, v{T+10}, s[4:7], s28 offen offset:512")
    p("s_waitcnt vmcnt(0)")
    for b in range(2):
        p(f"v_mfma_f32_32x32x16_bf16 {r(S[b],16)}, {r(KF[0])}, {r(Q[b])}, 0")
        p(f"v_mfma_f32_32x32x16_bf16 {r(S[b],16)}, {r(KF[0]+4)}, {r(Q[b]+4)}, {r(S[b],16)}")
    for b in range(2):
        for e in range(0, 16, 2): p(f"v_max3_f32 v{M+b}, v{M+b}, v{S[b]+e}, v{S[b]+e+1}")
    p(f"""s_add_u32 s28, s28, 2048
s_sub_u32 s33, s33, 1
s_cmp_lg_u32 s33, 0
s_cbranch_scc1 {n}_fbloop""")
    for b in range(2):
        p(f"v_mov_b32 v{M+2}, v{M+b}")
        p(f"v_permlane32_swap_b32 v{M+b}, v{M+2}")
        p(f"v_max_f32 v{M+b}, v{M+b}, v{M+2}")
    p(f"""s_lshl_b32 s3, s20, 9
v_lshlrev_b32 v{M+2}, 3, v{LN_}
v_add_u32 v{M+3}, s3, v{M+2}
s_xor_b32 s3, s3, 2048
v_add_u32 v{M+2}, s3, v{M+2}
ds_write_b64 v{M+3}, v[{M}:{M+1}]
s_waitcnt lgkmcnt(0)
s_barrier
ds_read_b64 v[{M+4}:{M+5}], v{M+2}
v_max_f32 v{M}, v{M}, v{M+4}
v_max_f32 v{M+1}, v{M+1}, v{M+5}""")
    for b in range(2):
        for e in range(16): p(f"v_sub_f32 v{NM[b]+e}, 0, v{M+b}")
    p(f"""s_waitcnt lgkmcnt(0)
s_barrier
s_branch {n}_start""")
    p(f"{n}_end:")
    p("s_endpgm")
    return p.finalize() + descriptor(n, 208, 208), f"; @launch kernel={n} grid=(256,1,1) block=(512,1,1) lds={NRING*ASTG}"

def parts():
    r = [gen_attn()]
    try:
        import gen3
        r += gen3.parts()
    except ImportError:
        pass
    return r
```

```python
import sys, os
sys.path.insert(0, "dev")
from asmlib import Prog
from gen import *

def gen_g2(D=4):
    p = Prog(); n = "g2_kernel"; header(p, n)
    def acc(i, t): b = (i * 4 + t) * 4; return f"v[{b}:{b+3}]"
    def xf(slot, i): b = slot * 32 + i * 4; return f"a[{b}:{b+3}]"
    WF = 32 * D
    VA = 128
    VW = 136
    AR = 140
    XR = 144
    T = 160
    p(f"""s_cmp_ge_u32 s2, 256
s_cbranch_scc1 {n}_end""")
    stamp(p, 0)
    p(f"""s_load_dwordx2 s[32:33], s[0:1], 16
s_load_dwordx2 s[36:37], s[0:1], 48
s_load_dwordx2 s[34:35], s[0:1], 72
s_load_dwordx2 s[38:39], s[0:1], 0
s_load_dwordx2 s[40:41], s[0:1], 56
v_lshrrev_b32 v{T}, 6, v0
v_and_b32 v{T+1}, 63, v0
v_readfirstlane_b32 s20, v{T}""")
    p("""s_and_b32 s3, s2, 7
s_lshr_b32 s4, s2, 3
s_lshr_b32 s21, s3, 1
s_lshl_b32 s21, s21, 2
s_and_b32 s5, s4, 3
s_add_u32 s21, s21, s5
s_and_b32 s22, s3, 1
s_lshl_b32 s22, s22, 3
s_lshr_b32 s5, s4, 2
s_add_u32 s22, s22, s5""")
    LN_ = T + 1
    p(f"""s_mul_i32 s3, s21, {8*ACT_T}
s_add_u32 s3, s3, {ACT_OFF}
v_lshlrev_b32 v{T+2}, 4, v{LN_}
v_add_u32 v{VA}, s3, v{T+2}""")
    for i in range(1, 8): p(f"v_add_u32 v{VA+i}, {ACT_T*i}, v{VA}")
    p(f"""v_lshrrev_b32 v{T+3}, 3, v{LN_}
v_bfe_u32 v{T+4}, v{LN_}, 1, 2
v_lshrrev_b32 v{T+5}, 4, v{LN_}
v_xor_b32 v{T+4}, v{T+4}, v{T+5}
v_and_b32 v{T+6}, 1, v{LN_}
v_lshl_or_b32 v{T+4}, v{T+4}, 1, v{T+6}
v_lshlrev_b32 v{VW}, 11, v{T+3}
v_lshl_add_u32 v{VW}, v{T+4}, 4, v{VW}
s_lshl_b32 s3, s22, 7
v_add_u32 v{VW}, s3, v{VW}""")
    for o in range(1, 4): p(f"v_add_u32 v{VW+o}, {16384*o}, v{VW}")
    p(f"""v_bfe_u32 v{T+3}, v{LN_}, 2, 2
v_lshl_add_u32 v{T+3}, v{T+5}, 2, v{T+3}
v_bfe_u32 v{T+4}, v{T+3}, 1, 2
v_and_b32 v{T+6}, 3, v{LN_}
v_lshlrev_b32 v{T+3}, 7, v{T+3}
v_lshl_add_u32 v{T+3}, v{T+6}, 3, v{T+3}
s_mul_i32 s29, s20, {4096*D}
v_add_u32 v{T+3}, s29, v{T+3}""")
    for t in range(4):
        p(f"v_xor_b32 v{T+6}, {t}, v{T+4}")
        p(f"v_lshl_add_u32 v{AR+t}, v{T+6}, 5, v{T+3}")
    p("s_waitcnt lgkmcnt(0)")
    srd(p, 4, "s34", "s35", hex(WS_BYTES))
    srd(p, 12, "s38", "s39", hex(4 << 20))
    srd(p, 16, "s40", "s41", hex(4 << 20))
    p("s_mov_b32 s11, 0x00020000")
    p("s_mov_b32 s23, s20")
    def issue_pre():
        p("""s_sub_u32 s25, s23, 32
s_cmp_lt_u32 s23, 32
s_cselect_b32 s25, s23, s25
s_cselect_b32 s26, s32, s36
s_cselect_b32 s27, s33, s37
s_lshl_b32 s25, s25, 16
s_add_u32 s8, s26, s25
s_addc_u32 s9, s27, 0
s_and_b32 s9, s9, 0xffff
s_cmp_lt_u32 s23, 144
s_cselect_b32 s10, 0x10000, 0
s_lshl_b32 s24, s23, 10
s_add_u32 s23, s23, 4""")
    def ld_w(slot, o):
        p(f"s_add_u32 m0, s29, {slot*4096 + o*1024}")
        return f"buffer_load_dwordx4 v{VW+o}, s[8:11], 0 offen lds"
    def ld_x(slot, i):
        return f"buffer_load_dwordx4 {xf(slot,i)}, v{VA+i}, s[4:7], s24 offen"
    for s in range(D - 1):
        issue_pre()
        for o in range(4): p(ld_w(s, o))
        for i in range(8): p(ld_x(s, i))
    p(f"""v_and_b32 v{T+3}, 15, v{LN_}
v_lshlrev_b32 v{T+3}, 11, v{T+3}
v_lshl_add_u32 v{T+3}, v{T+5}, 3, v{T+3}
s_lshl_b32 s3, s21, 18
s_lshl_b32 s28, s20, 16
s_add_u32 s28, s28, s3
s_lshl_b32 s3, s22, 7
s_add_u32 s28, s28, s3
v_add_u32 v{T+8}, s28, v{T+3}
v_add_u32 v{T+9}, 32768, v{T+8}""")
    for r_ in range(128): p(f"v_mov_b32 v{r_}, 0")
    def rdw(slot, buf, t):
        b = WF + buf * 16 + t * 4
        p(f"ds_read_b64_tr_b16 a[{b}:{b+1}], v{AR+t} offset:{slot*4096}")
        p(f"ds_read_b64_tr_b16 a[{b+2}:{b+3}], v{AR+t} offset:{slot*4096+2048}")
    p(f"s_waitcnt vmcnt({12*(D-2)+8})")
    for t in range(4): rdw(0, 0, t)
    stamp(p, 1)
    NST = 36
    assert NST % D == 0 and D % 2 == 0
    p(f"s_mov_b32 s30, {NST//D}")
    p(f"{n}_loop:")
    for s in range(D):
        buf = s & 1
        ls = (s + D - 1) % D
        ns = (s + 1) % D
        issue_pre()
        p(f"s_waitcnt vmcnt({12*(D-2)})")
        q = [("w", o) for o in range(4)] + [("x", i) for i in range(8)]
        cnt = 0
        pend = None
        for t in range(4):
            for i in range(8):
                b = WF + buf * 16 + t * 4
                if cnt % 2 == 0 and q and cnt < 24:
                    kind, idx = q.pop(0)
                    pend = ld_w(ls, idx) if kind == "w" else ld_x(ls, idx)
                p(f"v_mfma_f32_16x16x32_bf16 {acc(i,t)}, a[{b}:{b+3}], {xf(s,i)}, {acc(i,t)}")
                if pend: p(pend); pend = None
                cnt += 1
                if cnt == 24:
                    p(f"s_waitcnt vmcnt({12*(D-2)+8})")
                    for tt in range(4): rdw(ns, buf ^ 1, tt)
    p(f"""s_sub_u32 s30, s30, 1
s_cmp_lg_u32 s30, 0
s_cbranch_scc1 {n}_loop""")
    stamp(p, 2)
    for ii in range(2):
        for t in range(4):
            p(f"buffer_load_dwordx2 v[{XR+(ii*4+t)*2}:{XR+(ii*4+t)*2+1}], v{T+8+ii}, s[12:15], 0 offen offset:{t*32}")
    p("s_waitcnt vmcnt(8) lgkmcnt(0)")
    p("s_barrier")
    p(f"v_lshlrev_b32 v{T+2}, 4, v{LN_}")
    for w in range(4):
        p(f"s_cmp_eq_u32 s20, {w}")
        p(f"s_cbranch_scc0 {n}_red{w}")
        for d in range(4):
            if d == w: continue
            sl = (w - d - 1) & 3
            base = d * 24576 + sl * 8192
            p(f"v_add_u32 v{T+3}, {base}, v{T+2}")
            for ii in range(2):
                for t in range(4):
                    p(f"ds_write_b128 v{T+3}, {acc(2*d+ii,t)} offset:{(ii*4+t)*1024}")
        for ii in range(2):
            for t in range(4):
                b = ((2 * w + ii) * 4 + t) * 4
                for e in range(4): p(f"v_mov_b32 v{T+16+(ii*4+t)*4+e}, v{b+e}")
        p(f"{n}_red{w}:")
    p(f"""s_waitcnt lgkmcnt(0)
s_barrier
s_mul_i32 s3, s20, 24576
v_add_u32 v{T+3}, s3, v{T+2}""")
    for sl in range(3):
        for k in range(8):
            p(f"ds_read_b128 v[{(sl*8+k)*4}:{(sl*8+k)*4+3}], v{T+3} offset:{sl*8192+k*1024}")
    p("s_waitcnt vmcnt(0)")
    for k in range(8):
        o = T + 16 + k * 4
        for sl in range(3):
            b = (sl * 8 + k) * 4
            p(f"v_pk_add_f32 v[{o}:{o+1}], v[{o}:{o+1}], v[{b}:{b+1}]")
            p(f"v_pk_add_f32 v[{o+2}:{o+3}], v[{o+2}:{o+3}], v[{b+2}:{b+3}]")
        xr = XR + k * 2
        p(f"""v_lshlrev_b32 v{T+4}, 16, v{xr}
v_and_b32 v{T+5}, 0xffff0000, v{xr}
v_lshlrev_b32 v{T+6}, 16, v{xr+1}
v_and_b32 v{T+7}, 0xffff0000, v{xr+1}
v_pk_add_f32 v[{o}:{o+1}], v[{o}:{o+1}], v[{T+4}:{T+5}]
v_pk_add_f32 v[{o+2}:{o+3}], v[{o+2}:{o+3}], v[{T+6}:{T+7}]
v_cvt_pk_bf16_f32 v{xr}, v{o}, v{o+1}
v_cvt_pk_bf16_f32 v{xr+1}, v{o+2}, v{o+3}
buffer_store_dwordx2 v[{xr}:{xr+1}], v{T+8+(k>>2)}, s[16:19], 0 offen offset:{(k&3)*32}""")
    stamp(p, 3)
    stamp_out(p, 4, 0, "s20", int(os.environ.get("DSTRIDE", "32")))
    p(f"{n}_end:")
    p("s_endpgm")
    return p.finalize() + descriptor(n, 256 + WF + 32, 256), f"; @launch kernel={n} grid=(256,1,1) block=(256,1,1) lds={max(98304, 4*4096*D)}"

def parts():
    return [gen_g2()]
```

```python
import sys, struct
sys.path.insert(0, "dev")
from asmlib import Prog

NAME = "parallel_sum__mha_block__glu_gated_swiglu__prompt"
XN_OFF = 0
QKV_OFF = 4 << 20
ACT_OFF = 16 << 20
ACT_T = 144 * 1024
WS_BYTES = 268435456
LOG2E = 1.4426950408889634
def f2u(f): return struct.unpack("<I", struct.pack("<f", f))[0]
def hx(f): return "0x%08x" % f2u(f)

def header(p, name):
    p(f""".text
.globl {name}
.p2align 8
.type {name},@function
{name}:""")

def descriptor(name, nvgpr, accum):
    return f""".section .rodata,"a"
.p2align 6
.amdhsa_kernel {name}
  .amdhsa_next_free_vgpr {nvgpr}
  .amdhsa_next_free_sgpr 102
  .amdhsa_accum_offset {accum}
  .amdhsa_group_segment_fixed_size 0
  .amdhsa_kernarg_size 80
  .amdhsa_user_sgpr_count 2
  .amdhsa_user_sgpr_kernarg_segment_ptr 1
  .amdhsa_system_sgpr_workgroup_id_x 1
.end_amdhsa_kernel
"""

def srd(p, s, lo, hi, nrec):
    p(f"s_mov_b32 s{s}, {lo}")
    p(f"s_and_b32 s{s+1}, {hi}, 0xffff")
    p(f"s_mov_b32 s{s+2}, {nrec}")
    p(f"s_mov_b32 s{s+3}, 0x00020000")

import os
DBG = int(os.environ.get("DBG", "0"))
def stamp(p, k):
    if DBG:
        p(f"s_memtime s[{80+2*k}:{81+2*k}]")
        if k == 0: p("s_memrealtime s[96:97]")
        p("s_waitcnt lgkmcnt(0)")
def stamp_out(p, nst, vt, wavesgpr, stride=32):
    if not DBG: return
    p(f"""s_memrealtime s[98:99]
s_load_dwordx2 s[4:5], s[0:1], 64
s_waitcnt lgkmcnt(0)""")
    srd(p, 8, "s4", "s5", "256")
    for k in range(1, nst): p(f"s_sub_u32 s{80+2*k}, s{80+2*k}, s80")
    p("s_sub_u32 s98, s98, s96")
    for k in range(1, nst): p(f"v_mov_b32 v{vt+k-1}, s{80+2*k}")
    for k in range(nst, 8): p(f"v_mov_b32 v{vt+k-1}, 0")
    p(f"v_mov_b32 v{vt+7}, s98")
    import math
    sh = int(math.log2(stride))
    p(f"""s_lshr_b32 s3, s2, {sh}
s_lshl_b32 s3, s3, 5
s_min_u32 s3, s3, 0x1000
s_and_b32 s4, s2, {stride-1}
s_or_b32 s4, s4, {wavesgpr}
s_cmp_eq_u32 s4, 0
s_cselect_b32 s3, s3, 0x1000
v_mov_b32 v{vt+8}, 0
s_nop 3
buffer_store_dwordx4 v[{vt}:{vt+3}], v{vt+8}, s[8:11], s3 offen
buffer_store_dwordx4 v[{vt+4}:{vt+7}], v{vt+8}, s[8:11], s3 offen offset:16""")

def gen_ln():
    p = Prog(); n = "ln_kernel"; header(p, n)
    p(f"""s_cmp_ge_u32 s2, 256
s_cbranch_scc1 {n}_end
s_load_dwordx2 s[4:5], s[0:1], 0
s_load_dwordx2 s[6:7], s[0:1], 72
v_and_b32 v1, 63, v0
v_lshrrev_b32 v2, 6, v0
v_and_b32 v3, 7, v1
v_lshrrev_b32 v4, 3, v1
s_waitcnt lgkmcnt(0)""")
    srd(p, 8, "s4", "s5", hex(2048 * 1024 * 2))
    srd(p, 12, "s6", "s7", hex(4 << 20))
    p(f"""s_lshl_b32 s3, s2, 14
v_lshlrev_b32 v5, 11, v3
v_lshl_add_u32 v5, v2, 9, v5
v_lshl_add_u32 v5, v4, 4, v5""")
    for i in range(4):
        p(f"buffer_load_dwordx4 v[{8+4*i}:{11+4*i}], v5, s[8:11], s3 offen offset:{128*i}")
    p(f"""v_and_b32 v6, 3, v4
v_lshrrev_b32 v7, 2, v4
v_lshlrev_b32 v60, 13, v2
v_lshl_add_u32 v60, v7, 10, v60
v_lshl_add_u32 v60, v6, 8, v60
v_lshl_add_u32 v60, v3, 4, v60
s_lshr_b32 s16, s2, 1
s_lshl_b32 s16, s16, 15
s_and_b32 s17, s2, 1
s_lshl_b32 s17, s17, 7
s_add_u32 s16, s16, s17
v_lshlrev_b32 v61, 4, v3
v_lshl_add_u32 v62, v2, 2, v61
s_waitcnt vmcnt(0)""")
    for i in range(16):
        p(f"v_lshlrev_b32 v{24+2*i}, 16, v{8+i}")
        p(f"v_and_b32 v{25+2*i}, 0xffff0000, v{8+i}")
    def reduce(dst, ldsoff):
        p(f"""v_add_f32_dpp v{dst}, v{dst}, v{dst} row_ror:8 row_mask:0xf bank_mask:0xf
v_mov_b32 v63, v{dst}
v_permlane16_swap_b32 v{dst}, v63
v_add_f32 v{dst}, v{dst}, v63
v_mov_b32 v63, v{dst}
v_permlane32_swap_b32 v{dst}, v63
v_add_f32 v{dst}, v{dst}, v63
ds_write_b32 v62, v{dst} offset:{ldsoff}
s_waitcnt lgkmcnt(0)
s_barrier
ds_read_b128 v[64:67], v61 offset:{ldsoff}
v_add_f32 v64, v64, v65
v_add_f32 v66, v66, v67
v_add_f32 v{dst}, v64, v66""")
    p("v_pk_add_f32 v[56:57], v[24:25], v[26:27]")
    for i in range(2, 16):
        p(f"v_pk_add_f32 v[56:57], v[56:57], v[{24+2*i}:{25+2*i}]")
    p("v_add_f32 v56, v56, v57")
    reduce(56, 0)
    p(f"v_mul_f32 v56, {hx(1.0/1024)}, v56")
    p("v_mov_b32 v58, 0")
    p("v_mov_b32 v59, 0")
    for i in range(32):
        p(f"v_sub_f32 v{8+(i&7)}, v{24+i}, v56")
        p(f"v_fmac_f32 v{58+(i&1)}, v{8+(i&7)}, v{8+(i&7)}")
    p("v_add_f32 v58, v58, v59")
    reduce(58, 128)
    p(f"""v_mul_f32 v58, {hx(1.0/1024)}, v58
v_cvt_pk_bf16_f32 v57, v56, v58
v_lshlrev_b32 v56, 16, v57
v_and_b32 v58, 0xffff0000, v57
v_add_f32 v58, {hx(1e-5)}, v58
v_cvt_pk_bf16_f32 v58, v58, v58
v_and_b32 v58, 0xffff0000, v58
v_sqrt_f32 v58, v58
v_cvt_pk_bf16_f32 v58, v58, v58
v_and_b32 v58, 0xffff0000, v58
v_rcp_f32 v58, v58""")
    for i in range(16):
        a, b = 24 + 2 * i, 25 + 2 * i
        p(f"""v_sub_f32 v{a}, v{a}, v56
v_sub_f32 v{b}, v{b}, v56
v_cvt_pk_bf16_f32 v{8+i}, v{a}, v{b}
v_lshlrev_b32 v{a}, 16, v{8+i}
v_and_b32 v{b}, 0xffff0000, v{8+i}
v_mul_f32 v{a}, v{a}, v58
v_mul_f32 v{b}, v{b}, v58
v_cvt_pk_bf16_f32 v{8+i}, v{a}, v{b}""")
    for i in range(4):
        p(f"buffer_store_dwordx4 v[{8+4*i}:{11+4*i}], v60, s[12:15], s16 offen offset:{2048*(i&1)}")
        if i == 1: p("s_add_u32 s16, s16, 4096")
    p(f"{n}_end:")
    p("s_endpgm")
    return p.finalize() + descriptor(n, 72, 72), f"; @launch kernel={n} grid=(256,1,1) block=(256,1,1) lds=256"

STG = 36864
def gen_g1():
    p = Prog(); n = "g1_kernel"; header(p, n)
    def acc(i, j):
        if i < 5: b = (i * 10 + j) * 4; return f"v[{b}:{b+3}]"
        b = ((i - 5) * 10 + j) * 4; return f"a[{b}:{b+3}]"
    def xf(buf, i): b = 120 + buf * 32 + i * 4; return f"a[{b}:{b+3}]"
    def wf(j): return 184 + (j % 5) * 4
    VX, VP, VS, AX, AP, AS = 200, 204, 208, 209, 211, 219
    p(f"""s_cmp_ge_u32 s2, 256
s_cbranch_scc1 {n}_end""")
    stamp(p, 0)
    p(f"""s_load_dwordx2 s[32:33], s[0:1], 8
s_load_dwordx4 s[36:39], s[0:1], 32
s_load_dwordx2 s[34:35], s[0:1], 72
v_lshrrev_b32 v221, 6, v0
v_and_b32 v222, 63, v0
v_readfirstlane_b32 s20, v221
s_and_b32 s21, s2, 7
s_lshl_b32 s21, s21, 2
s_lshr_b32 s3, s2, 3
s_and_b32 s3, s3, 3
s_add_u32 s21, s21, s3
s_lshr_b32 s22, s2, 5""")
    p("""s_mul_i32 s40, s21, 10
s_cmp_eq_u32 s21, 9
s_cselect_b32 s41, 1, 0
s_cmp_ge_u32 s21, 10
s_cselect_b32 s42, 1, 0
s_sub_u32 s45, s21, 10
s_lshr_b32 s46, s45, 1
s_mul_i32 s46, s46, 10
s_and_b32 s45, s45, 1
s_lshl_b32 s43, s45, 2
s_add_u32 s43, s43, s46
s_add_u32 s44, s46, 8
s_add_u32 s44, s44, s45""")
    def pair_info(hi, side, d_gu, d_blk):
        p(f"""s_or_b32 s47, s41, s42
s_cmp_lg_u32 {hi}, 0
s_cselect_b32 {d_gu}, s47, s42""")
        p(f"""s_cmp_lg_u32 s41, 0
s_cselect_b32 s47, 2, 4
s_mul_i32 s47, s47, {side}
s_lshl_b32 s48, {hi}, 1
s_add_u32 s47, s47, s48
s_add_u32 s47, s47, s40""")
        p(f"""s_add_u32 s48, s48, s43
s_cmp_lg_u32 s41, 0
s_cselect_b32 s48, 110, s48
s_cmp_lg_u32 {d_gu}, 0
s_cselect_b32 {d_blk}, s48, s47""")
    def single_info(side, d_gu, d_blk):
        p(f"""s_mov_b32 {d_gu}, s42
s_cmp_lg_u32 s41, 0
s_cselect_b32 s47, 4, 8
s_add_u32 s47, s47, s40
s_add_u32 s47, s47, {side}
s_cmp_lg_u32 s42, 0
s_cselect_b32 {d_blk}, s44, s47""")
    p("""s_and_b32 s50, s20, 1
s_lshr_b32 s51, s20, 1""")
    pair_info("s50", "s51", "s52", "s53")
    single_info("s51", "s54", "s55")
    p("s_waitcnt lgkmcnt(0)")
    def wsrd(s, gu, blk, pitch):
        p(f"""s_cmp_lg_u32 s51, 0
s_cselect_b32 s47, s38, s36
s_cselect_b32 s48, s39, s37
s_cmp_lg_u32 {gu}, 0
s_cselect_b32 s47, s47, s32
s_cselect_b32 s48, s48, s33
s_cselect_b32 {pitch}, 7, 6
s_lshl_b32 {pitch}, {pitch}, 10
s_lshl_b32 s49, {blk}, 6
s_add_u32 s{s}, s47, s49
s_addc_u32 s{s+1}, s48, 0
s_and_b32 s{s+1}, s{s+1}, 0xffff
s_lshl_b32 s{s+2}, {pitch}, 10
s_sub_u32 s{s+2}, s{s+2}, s49
s_mov_b32 s{s+3}, 0x00020000""")
    wsrd(8, "s52", "s53", "s56")
    wsrd(12, "s54", "s55", "s57")
    srd(p, 4, "s34", "s35", hex(4 << 20))
    srd(p, 16, "s34", "s35", hex(WS_BYTES))
    p("""s_lshl_b32 s26, s56, 5
s_lshl_b32 s27, s57, 5
s_mov_b32 s23, 0
s_mov_b32 s24, 0
s_mov_b32 s25, 0
s_lshl_b32 s29, s20, 12
s_lshl_b32 s31, s20, 10""")
    p(f"""s_lshl_b32 s3, s22, 4
s_lshl_b32 s47, s20, 2
s_add_u32 s3, s3, s47
s_lshl_b32 s3, s3, 15
v_lshlrev_b32 v223, 4, v222
v_add_u32 v{VX}, s3, v223""")
    for j in range(1, 4): p(f"v_add_u32 v{VX+j}, {32768*j}, v{VX}")
    p(f"""v_lshrrev_b32 v224, 3, v222
v_and_b32 v225, 7, v222
v_lshrrev_b32 v226, 1, v225
v_bfe_u32 v227, v224, 1, 1
v_xor_b32 v226, v226, v227
v_and_b32 v225, 1, v225
v_mul_lo_u32 v228, v224, s56
s_lshl_b32 s47, s56, 3""")
    for o in range(4):
        p(f"""v_xor_b32 v229, {2*(o&1)}, v226
v_lshl_or_b32 v229, v229, 1, v225
v_lshl_add_u32 v{VP+o}, v229, 4, v228""")
        if o < 3: p("v_add_u32 v228, s47, v228")
    p(f"""v_lshrrev_b32 v224, 2, v222
s_lshl_b32 s47, s50, 4
v_add_u32 v224, s47, v224
v_mul_lo_u32 v228, v224, s57
v_and_b32 v225, 3, v222
v_lshrrev_b32 v226, 5, v222
v_lshlrev_b32 v226, 1, v226
v_xor_b32 v225, v225, v226
v_lshl_add_u32 v{VS}, v225, 4, v228""")
    def dma(slot, idx):
        if idx < 4:
            p(f"s_add_u32 m0, s29, {slot*STG + idx*1024}")
            p(f"buffer_load_dwordx4 v{VX+idx}, s[4:7], s23 offen lds")
        elif idx < 8:
            p(f"s_add_u32 m0, s29, {slot*STG + 16384 + (idx-4)*1024}")
            p(f"buffer_load_dwordx4 v{VP+idx-4}, s[8:11], s24 offen lds")
        else:
            p(f"s_add_u32 m0, s31, {slot*STG + 32768}")
            p(f"buffer_load_dwordx4 v{VS}, s[12:15], s25 offen lds")
    def adv():
        p("""s_add_u32 s23, s23, 1024
s_add_u32 s24, s24, s26
s_add_u32 s25, s25, s27""")
    DORD = [4, 5, 6, 7, 8, 0, 1, 2, 3]
    for s in range(3):
        for idx in DORD: dma(s, idx)
        adv()
    p(f"""s_lshl_b32 s47, s51, 13
v_add_u32 v{AX}, s47, v223
v_add_u32 v{AX+1}, {2*STG}, v{AX}
v_lshrrev_b32 v224, 4, v222
v_bfe_u32 v225, v222, 2, 2
v_and_b32 v226, 3, v222
v_lshl_add_u32 v227, v224, 3, v225
v_lshrrev_b32 v228, 1, v225
v_and_b32 v229, 1, v224
v_lshl_or_b32 v228, v229, 1, v228
v_lshlrev_b32 v230, 7, v227
v_lshl_add_u32 v230, v226, 3, v230
s_lshl_b32 s47, s50, 12
v_add_u32 v230, s47, v230""")
    for t in range(4):
        p(f"""v_xor_b32 v231, {t}, v228
v_lshl_add_u32 v{AP+t}, v231, 5, v230
v_add_u32 v{AP+4+t}, {2*STG}, v{AP+t}""")
    p(f"""v_xor_b32 v229, s50, v229
v_lshlrev_b32 v230, 6, v227
v_lshl_add_u32 v230, v226, 3, v230
v_lshl_add_u32 v230, v229, 5, v230
v_add_u32 v{AS}, 32768, v230
v_add_u32 v{AS+1}, {32768+2*STG}, v230""")
    for r in range(200): p(f"v_mov_b32 v{r}, 0")
    for r in range(120): p(f"v_accvgpr_write_b32 a{r}, 0")
    def rdx(slot, buf, i):
        p(f"ds_read_b128 {xf(buf, i)}, v{AX+(slot>>1)} offset:{(slot&1)*STG + i*1024}")
    def rdw(slot, j):
        t, side = j >> 1, j & 1
        b = wf(j)
        if t < 4:
            off = (slot & 1) * STG + 16384 + side * 8192; a = AP + 4 * (slot >> 1) + t; d = 512
        else:
            off = (slot & 1) * STG + side * 2048; a = AS + (slot >> 1); d = 256
        p(f"ds_read_b64_tr_b16 a[{b}:{b+1}], v{a} offset:{off}")
        p(f"ds_read_b64_tr_b16 a[{b+2}:{b+3}], v{a} offset:{off+d}")
    stamp(p, 1)
    p("s_waitcnt vmcnt(18)")
    p("s_barrier")
    stamp(p, 2)
    for j in range(3): rdw(0, j)
    for i in range(8): rdx(0, 0, i)
    def stage(slot, do_dma, vm, last=False):
        buf = slot & 1
        nslot = (slot + 1) & 3
        if not last:
            p(f"s_waitcnt vmcnt({vm})")
            p("s_barrier")
        dq = list(DORD) if do_dma else []
        for j in range(10):
            for i in range(8):
                b = wf(j)
                p(f"v_mfma_f32_16x16x32_bf16 {acc(i,j)}, a[{b}:{b+3}], {xf(buf,i)}, {acc(i,j)}")
                if i == 0:
                    if j + 3 < 10: rdw(slot, j + 3)
                    elif not last: rdw(nslot, j + 3 - 10)
                if i == 4 and 1 <= j <= 8 and not last: rdx(nslot, buf ^ 1, j - 1)
                if i in (2, 6) and dq: dma((slot + 3) & 3, dq.pop(0))
        if do_dma: adv()
    p("s_mov_b32 s28, 7")
    p(f"{n}_loop:")
    for s in range(4): stage(s, True, 9)
    p(f"""s_sub_u32 s28, s28, 1
s_cmp_lg_u32 s28, 0
s_cbranch_scc1 {n}_loop""")
    stamp(p, 3)
    stage(0, True, 9)
    stage(1, False, 9)
    stage(2, False, 0)
    stage(3, False, 0, last=True)
    stamp(p, 4)
    pair_info("s50", "0", "s60", "s61")
    pair_info("s50", "1", "s60", "s62")
    single_info("0", "s63", "s64")
    single_info("1", "s63", "s65")
    QS = (32 ** -0.5) * LOG2E
    p(f"""s_mov_b32 s70, {hx(-LOG2E)}
s_mov_b32 s71, {hx(-LOG2E)}
s_mov_b32 s72, 1.0
s_mov_b32 s73, 1.0
s_lshl_b32 s66, s22, 4
s_lshl_b32 s47, s51, 3
s_add_u32 s66, s66, s47
s_lshl_b32 s47, s50, 3
v_add_u32 v224, s47, v223
s_nop 7""")
    T0 = 226
    def getacc(i, j, tmp):
        if i < 5: return (i * 10 + j) * 4
        b = ((i - 5) * 10 + j) * 4
        for e in range(4): p(f"v_accvgpr_read_b32 v{tmp+e}, a{b+e}")
        return tmp
    def qkv_group(tiles, blkG, blkU, boff, vo):
        for side, blk in ((0, blkG), (1, blkU)):
            p(f"""s_add_u32 s47, {blk}, {boff}
s_cmp_lt_u32 s47, 32
s_cselect_b32 s76, {hx(QS)}, 1.0
s_mov_b32 s77, s76
s_lshl_b32 s74, s47, 17
s_lshl_b32 s47, s66, 10
s_add_u32 s74, s74, s47
s_add_u32 s74, s74, {QKV_OFF}""")
            for i in range(8):
                o = T0 + 8 + (i & 1) * 4
                for k, t in enumerate(tiles):
                    r = getacc(i, 2 * t + side, T0 + 4 * k)
                    p(f"v_pk_mul_f32 v[{r}:{r+1}], v[{r}:{r+1}], s[76:77]")
                    p(f"v_pk_mul_f32 v[{r+2}:{r+3}], v[{r+2}:{r+3}], s[76:77]")
                    p(f"v_cvt_pk_bf16_f32 v{o+2*k}, v{r}, v{r+1}")
                    p(f"v_cvt_pk_bf16_f32 v{o+2*k+1}, v{r+2}, v{r+3}")
                if len(tiles) == 2: p(f"buffer_store_dwordx4 v[{o}:{o+3}], v{vo}, s[16:19], s74 offen offset:{(i&3)*1024}")
                else: p(f"buffer_store_dwordx2 v[{o}:{o+1}], v{vo}, s[16:19], s74 offen offset:{(i&3)*1024}")
                if i == 3: p("s_add_u32 s74, s74, 4096")
    def gu_group(tiles, blk, boff, vo):
        p(f"""s_add_u32 s47, {blk}, {boff+32}
s_lshl_b32 s74, s47, 10
s_mul_i32 s47, s66, {ACT_T}
s_add_u32 s74, s74, s47
s_add_u32 s74, s74, {ACT_OFF}""")
        for i in range(8):
            o = T0 + 16 + (i & 1) * 4
            for k, t in enumerate(tiles):
                g = getacc(i, 2 * t, T0)
                u = getacc(i, 2 * t + 1, T0 + 4)
                e = T0 + 8 + 4 * (k & 1)
                p(f"v_pk_mul_f32 v[{e}:{e+1}], v[{g}:{g+1}], s[70:71]")
                p(f"v_pk_mul_f32 v[{e+2}:{e+3}], v[{g+2}:{g+3}], s[70:71]")
                for x in range(4): p(f"v_exp_f32 v{e+x}, v{e+x}")
                p(f"v_pk_mul_f32 v[{g}:{g+1}], v[{g}:{g+1}], v[{u}:{u+1}]")
                p(f"v_pk_mul_f32 v[{g+2}:{g+3}], v[{g+2}:{g+3}], v[{u+2}:{u+3}]")
                p(f"v_pk_add_f32 v[{e}:{e+1}], v[{e}:{e+1}], s[72:73]")
                p(f"v_pk_add_f32 v[{e+2}:{e+3}], v[{e+2}:{e+3}], s[72:73]")
                for x in range(4): p(f"v_rcp_f32 v{e+x}, v{e+x}")
                p(f"v_pk_mul_f32 v[{g}:{g+1}], v[{g}:{g+1}], v[{e}:{e+1}]")
                p(f"v_pk_mul_f32 v[{g+2}:{g+3}], v[{g+2}:{g+3}], v[{e+2}:{e+3}]")
                p(f"v_cvt_pk_bf16_f32 v{o+2*k}, v{g}, v{g+1}")
                p(f"v_cvt_pk_bf16_f32 v{o+2*k+1}, v{g+2}, v{g+3}")
            if len(tiles) == 2: p(f"buffer_store_dwordx4 v[{o}:{o+3}], v{vo}, s[16:19], s74 offen")
            else: p(f"buffer_store_dwordx2 v[{o}:{o+1}], v{vo}, s[16:19], s74 offen")
            if i < 7: p(f"s_add_u32 s74, s74, {ACT_T}")
    p(f"""s_cmp_lg_u32 s60, 0
s_cbranch_scc1 {n}_gu_ab""")
    qkv_group((0, 1), "s61", "s62", 0, 223)
    qkv_group((2, 3), "s61", "s62", 1, 223)
    p(f"s_branch {n}_c")
    p(f"{n}_gu_ab:")
    gu_group((0, 1), "s61", 0, 223)
    gu_group((2, 3), "s61", 1, 223)
    p(f"{n}_c:")
    p("s_nop 3")
    p(f"""s_cmp_lg_u32 s63, 0
s_cbranch_scc1 {n}_gu_c""")
    qkv_group((4,), "s64", "s65", 0, 224)
    p(f"s_branch {n}_fin")
    p(f"{n}_gu_c:")
    gu_group((4,), "s64", 0, 224)
    p(f"{n}_fin:")
    stamp(p, 5)
    if DBG: p("s_waitcnt vmcnt(0)")
    stamp(p, 6)
    stamp_out(p, 7, 0, "s20", int(os.environ.get("DSTRIDE", "32")))
    p(f"{n}_end:")
    p("s_endpgm")
    return p.finalize() + descriptor(n, 512, 256), f"; @launch kernel={n} grid=(256,1,1) block=(256,1,1) lds={4*STG}"

def build(parts, path):
    hdr = open(f"cdna_kernels/{NAME}.s.ref").read().split("; Override launch")[0]
    txt = hdr + "\n".join(l for _, l in parts) + "\n" + '.amdgcn_target "amdgcn-amd-amdhsa--gfx950"\n' + "".join(c for c, _ in parts)
    open(path, "w").write(txt)
    print("wrote", path, len(txt))

if __name__ == "__main__":
    parts = [gen_ln(), gen_g1()]
    try:
        import gen2
        parts += gen2.parts()
    except ImportError:
        pass
    build(parts, sys.argv[1] if len(sys.argv) > 1 else f"cdna_kernels/{NAME}.s")
```

```python
import sys, os
sys.path.insert(0, "dev")
from asmlib import Prog
from gen import *

PART_OFF = 40 << 20
ASTG = 16384
K2_LDS = 49152 + 1024
GPRIO = int(os.environ.get("GPRIO", "0"))
APRIO = os.environ.get("APRIO", "3:16,2:8,1:3")
GSCHED = os.environ.get("GSCHED", "")
def r(b, k=4): return f"v[{b}:{b+k-1}]"

def attn_part(p, n):
    S = [0, 16]; O = [32, 48]; P = [64, 72]; KF = [80, 88]; VF = [96, 104]; L = [112, 116]; Q = [120, 128]
    SEL = 136; VD = 140; AK, AV0, AV1 = 142, 143, 144; BK, BV0, BV1 = 145, 146, 147; NK = 148; NM = 150
    T = 152; LN_ = T + 1; KL = T + 10
    p(f"""s_and_b32 s21, s2, 7
s_lshl_b32 s21, s21, 2
s_bfe_u32 s3, s2, 0x20003
s_add_u32 s21, s21, s3
s_lshr_b32 s22, s2, 5
s_cmp_ge_u32 s2, 512
s_cselect_b32 s3, 8, 0
s_sub_u32 s22, s22, s3
s_and_b32 s23, s20, 1
s_lshr_b32 s24, s20, 1
s_mov_b32 s40, 0
v_lshlrev_b32 v{VD}, 4, v{LN_}
v_lshrrev_b32 v{T+2}, 4, v{LN_}
v_lshlrev_b32 v{T+3}, 2, v{T+2}
v_xor_b32 v{T+3}, v{T+3}, v{LN_}
v_lshlrev_b32 v{VD+1}, 4, v{T+3}
v_add_u32 v{VD+1}, {32*131072}, v{VD+1}
s_add_u32 s25, s21, 32
s_lshl_b32 s25, s25, 17
s_add_u32 s25, s25, {QKV_OFF}
s_lshl_b32 s26, s24, 16
s_add_u32 s25, s25, s26
s_lshl_b32 s26, s23, 11
s_add_u32 s25, s25, s26
s_lshl_b32 s27, s24, 13
s_add_u32 s27, s27, s26
s_waitcnt lgkmcnt(0)""")
    srd(p, 4, "s34", "s35", hex(WS_BYTES))
    def dma_stage(slot_sgpr):
        p(f"s_add_u32 s3, s27, {slot_sgpr}")
        for kv in range(2):
            p(f"s_add_u32 m0, s3, {kv*4096}")
            p(f"buffer_load_dwordx4 v{VD+kv}, s[4:7], s28 offen lds")
            p(f"buffer_load_dwordx4 v{VD+kv}, s[4:7], s28 offen offset:1024 lds")
        p("s_add_u32 s28, s28, 4096")
    def start_dma():
        p("s_mov_b32 s28, s25")
        dma_stage("0")
    start_dma()
    p(f"""v_bfe_u32 v{T+2}, v{LN_}, 4, 1
v_lshrrev_b32 v{T+3}, 5, v{LN_}
v_and_b32 v{T+4}, 15, v{LN_}
v_lshlrev_b32 v{KL}, 10, v{T+2}
v_lshl_add_u32 v{KL}, v{T+3}, 8, v{KL}
v_lshl_add_u32 v{KL}, v{T+4}, 4, v{KL}
s_lshl_b32 s26, s21, 17
s_add_u32 s26, s26, {QKV_OFF}
s_lshl_b32 s3, s22, 13
s_add_u32 s26, s26, s3
s_lshl_b32 s3, s23, 12
s_add_u32 s26, s26, s3""")
    for b in range(2):
        for x in range(2):
            p(f"buffer_load_dwordx4 {r(Q[b]+4*x)}, v{KL}, s[4:7], s26 offen offset:{b*2048+x*512}")
    dma_stage(str(ASTG))
    dma_stage(str(2*ASTG))
    p(f"""s_lshl_b32 s26, s24, 13
v_add_u32 v{BK}, s26, v{KL}
v_and_b32 v{T+5}, 3, v{LN_}
v_bfe_u32 v{T+6}, v{LN_}, 2, 2
v_xor_b32 v{T+7}, v{T+3}, v{T+5}
v_lshl_add_u32 v{T+7}, v{T+7}, 2, v{T+6}
v_lshlrev_b32 v{BV0}, 8, v{T+5}
v_lshl_add_u32 v{BV0}, v{T+7}, 4, v{BV0}
v_lshl_add_u32 v{BV0}, v{T+2}, 3, v{BV0}
s_add_u32 s26, s26, 4096
v_add_u32 v{BV0}, s26, v{BV0}
v_xor_b32 v{BV1}, 128, v{BV0}
v_bfe_u32 v{T+5}, v{LN_}, 2, 1
v_cmp_eq_u32 vcc, v{T+5}, v{T+2}
v_mov_b32 v{T+6}, 0x3f803f80
v_cndmask_b32 v{SEL}, 0, v{T+6}, vcc
v_mov_b32 v{SEL+1}, v{SEL}
v_mov_b32 v{SEL+2}, v{SEL}
v_mov_b32 v{SEL+3}, v{SEL}""")
    def rdk(buf, areg, kblk):
        p(f"ds_read_b128 {r(KF[buf])}, v{areg} offset:{kblk*2048}")
        p(f"ds_read_b128 {r(KF[buf]+4)}, v{areg} offset:{kblk*2048+512}")
    def rdv(buf, kblk):
        for x in range(2):
            p(f"ds_read_b64_tr_b16 {r(VF[buf]+4*x,2)}, v{AV0} offset:{kblk*2048+x*1024}")
            p(f"ds_read_b64_tr_b16 {r(VF[buf]+4*x+2,2)}, v{AV1} offset:{kblk*2048+x*1024}")
    def qk(b, buf, x):
        c = "0" if x == 0 else r(S[b], 16)
        p(f"v_mfma_f32_32x32x16_bf16 {r(S[b],16)}, {r(KF[buf]+4*x)}, {r(Q[b]+4*x)}, {c}")
    def pv(b, buf, x):
        p(f"v_mfma_f32_32x32x16_bf16 {r(O[b],16)}, {r(VF[buf]+4*x)}, {r(P[b]+4*x)}, {r(O[b],16)}")
    def sm(b, x):
        p(f"v_mfma_f32_16x16x32_bf16 {r(L[b])}, {r(SEL)}, {r(P[b]+4*x)}, {r(L[b])}")
    def ex(b, x, part, sub):
        base = S[b] + 8 * x + 4 * part
        if sub:
            for e in range(4): p(f"v_sub_f32 v{base+e}, v{base+e}, v{NM+b}")
        for e in range(4): p(f"v_exp_f32 v{base+e}, v{base+e}")
    def cv(b, x, part):
        base = S[b] + 8 * x + 4 * part
        for e in range(2): p(f"v_cvt_pk_bf16_f32 v{P[b]+4*x+2*part+e}, v{base+2*e}, v{base+2*e+1}")
    def mainloop(tag, sub):
        for b in range(2):
            for e in range(16): p(f"v_mov_b32 v{O[b]+e}, 0")
            for e in range(4): p(f"v_mov_b32 v{L[b]+e}, 0")
        for e in range(8): p(f"v_mov_b32 v{P[1]+e}, 0")
        for e in range(8): p(f"v_mov_b32 v{VF[1]+e}, 0")
        p("s_waitcnt vmcnt(8)")
        p("s_barrier")
        if not sub: stamp(p, 1)
        rdk(0, BK, 0)
        qk(0, 0, 0); qk(0, 0, 1)
        p(f"""s_mov_b32 s29, 0
s_mov_b32 s30, {ASTG}
s_mov_b32 s31, {2*ASTG}
s_mov_b32 s33, 16""")
        p(f"{n}_{tag}loop:")
        if APRIO and not sub:
            for k, it in enumerate(APRIO.split(",")):
                pr, rem = it.split(":")
                p(f"""s_cmp_lg_u32 s33, {rem}
s_cbranch_scc1 {n}_ap{k}
s_setprio {pr}
{n}_ap{k}:""")
        p(f"""v_add_u32 v{AK}, s29, v{BK}
v_add_u32 v{AV0}, s29, v{BV0}
v_add_u32 v{AV1}, s29, v{BV1}
v_add_u32 v{NK}, s30, v{BK}""")
        for kb in range(2):
            cur, nxt = kb & 1, (kb & 1) ^ 1
            rdv(cur, kb)
            for x in range(2):
                qk(1, cur, x)
                ex(0, x, 0, sub)
                pv(1, nxt, x)
                ex(0, x, 1, sub)
                cv(0, x, 0)
                sm(1, x)
                cv(0, x, 1)
                if x == 0:
                    if kb < 1: rdk(nxt, AK, kb + 1)
                    else:
                        p(f"""s_cmp_le_u32 s33, 3
s_cbranch_scc1 {n}_{tag}nodma
s_waitcnt vmcnt(4) lgkmcnt(0)
s_barrier""")
                        dma_stage("s29")
                        p(f"""s_branch {n}_{tag}join
{n}_{tag}nodma:
s_waitcnt vmcnt(0) lgkmcnt(0)
s_barrier
{n}_{tag}join:""")
                        rdk(nxt, NK, 0)
            for x in range(2):
                qk(0, nxt, x)
                ex(1, x, 0, sub)
                pv(0, cur, x)
                ex(1, x, 1, sub)
                cv(1, x, 0)
                sm(0, x)
                cv(1, x, 1)
        p(f"""s_mov_b32 s3, s29
s_mov_b32 s29, s30
s_mov_b32 s30, s31
s_mov_b32 s31, s3
s_sub_u32 s33, s33, 1
s_cmp_lg_u32 s33, 0
s_cbranch_scc1 {n}_{tag}loop""")
        for x in range(2):
            pv(1, 1, x)
            sm(1, x)
    mainloop("a", False)
    p(f"{n}_merge:")
    stamp(p, 2)
    F = T + 12
    p(f"""s_mul_i32 s26, s20, 4608
v_lshlrev_b32 v{T+2}, 4, v{LN_}
v_lshlrev_b32 v{T+3}, 2, v{LN_}
s_xor_b32 s3, s20, 2
s_mul_i32 s3, s3, 4608
v_add_u32 v{T+4}, s3, v{T+2}
v_add_u32 v{T+5}, s3, v{T+3}
v_add_u32 v{T+2}, s26, v{T+2}
v_add_u32 v{T+3}, s26, v{T+3}
s_waitcnt lgkmcnt(0)
s_barrier
s_cmp_lg_u32 s24, 0
s_cbranch_scc1 {n}_h1""")
    def fin(mine, other):
        p("s_nop 7")
        for e in range(4): p(f"ds_write_b128 v{T+2}, {r(O[other]+4*e)} offset:{e*1024}")
        p(f"ds_write_b32 v{T+3}, v{L[other]} offset:4096")
        p(f"""v_bfe_u32 v{F}, v{LN_}, 4, 1
v_mul_u32_u24 v{F}, {ACT_T}, v{F}
v_lshrrev_b32 v{F+1}, 5, v{LN_}
v_lshl_add_u32 v{F}, v{F+1}, 8, v{F}
v_and_b32 v{F+1}, 15, v{LN_}
v_lshl_add_u32 v{F}, v{F+1}, 4, v{F}
s_lshl_b32 s3, s22, 3
s_lshl_b32 s26, s23, 2
s_add_u32 s3, s3, s26
s_add_u32 s3, s3, {2*mine}
s_mul_i32 s3, s3, {ACT_T}
s_lshl_b32 s26, s21, 10
s_add_u32 s3, s3, s26
s_add_u32 s26, s3, {ACT_OFF}
s_waitcnt lgkmcnt(0)
s_barrier""")
        p(f"ds_read_b32 v{S[1]}, v{T+5} offset:4096")
        for e in range(4): p(f"ds_read_b128 {r(S[0]+4*e)}, v{T+4} offset:{e*1024}")
        p(f"""v_add_f32 v{S[1]}, v{S[1]}, v{L[mine]}
v_mov_b32 v{T+7}, {hx(2.0**60)}
v_cmp_nlt_f32 vcc, v{S[1]}, v{T+7}
s_mov_b64 s[36:37], vcc
v_mov_b32 v{T+7}, {hx(2.0**-60)}
v_cmp_ngt_f32 vcc, v{S[1]}, v{T+7}
s_or_b64 s[36:37], s[36:37], vcc
s_cmp_lg_u64 s[36:37], 0
s_cselect_b32 s38, 1, 0
v_mov_b32 v{T+6}, s38
s_lshl_b32 s3, s20, 2
s_add_u32 s3, s3, 49152
v_mov_b32 v{T+7}, s3
ds_write_b32 v{T+7}, v{T+6}
v_rcp_f32 v{S[1]}, v{S[1]}""")
        for e in range(16): p(f"v_add_f32 v{S[0]+e}, v{S[0]+e}, v{O[mine]+e}")
        p("s_waitcnt lgkmcnt(0)")
        p("s_barrier")
        p(f"v_mov_b32 v{T+7}, 49152")
        p(f"ds_read_b128 {r(KF[0])}, v{T+7}")
        for e in range(16): p(f"v_mul_f32 v{S[0]+e}, v{S[0]+e}, v{S[1]}")
        for u in range(2):
            for k2, b in enumerate((4 * u, 4 * u + 2, 8 + 4 * u, 8 + 4 * u + 2)):
                p(f"v_cvt_pk_bf16_f32 v{P[0]+4*u+k2}, v{S[0]+b}, v{S[0]+b+1}")
        p(f"""v_or3_b32 v{KF[0]}, v{KF[0]}, v{KF[0]+1}, v{KF[0]+2}
v_or_b32 v{KF[0]}, v{KF[0]}, v{KF[0]+3}
v_readfirstlane_b32 s38, v{KF[0]}
s_andn2_b32 s38, s38, s40
s_cmp_lg_u32 s38, 0
s_cbranch_scc1 {n}_fallback
buffer_store_dwordx4 {r(P[0])}, v{F}, s[4:7], s26 offen sc1
buffer_store_dwordx4 {r(P[0]+4)}, v{F}, s[4:7], s26 offen offset:512 sc1
s_lshl_b32 s3, s22, 1
s_lshr_b32 s26, s21, 4
s_add_u32 s3, s3, s26
s_lshl_b32 s3, s3, 2
s_lshl_b32 s26, s23, 1
s_add_u32 s3, s3, s26
s_add_u32 s3, s3, {mine}
s_lshl_b32 s3, s3, 7
s_add_u32 s3, s3, {FLAG_OFF}
v_mov_b32 v{F+1}, 1
v_mov_b32 v{F+2}, 0
s_mov_b64 exec, 1
s_waitcnt vmcnt(0)
buffer_atomic_add v{F+1}, v{F+2}, s[4:7], s3 offen sc1
s_mov_b64 exec, -1""")
        stamp(p, 3)
        stamp_out(p, 4, 0, "s20", 2)
        p("s_endpgm")
    fin(0, 1)
    p(f"{n}_h1:")
    fin(1, 0)
    p(f"{n}_fallback:")
    M = NM
    p(f"""s_mov_b32 s40, 1
v_mov_b32 v{M}, 0xff800000
v_mov_b32 v{M+1}, 0xff800000
s_add_u32 s28, s21, 32
s_lshl_b32 s28, s28, 17
s_add_u32 s28, s28, {QKV_OFF}
s_lshl_b32 s3, s24, 16
s_add_u32 s28, s28, s3
s_mov_b32 s33, 32""")
    p(f"{n}_fbloop:")
    p(f"buffer_load_dwordx4 {r(KF[0])}, v{KL}, s[4:7], s28 offen")
    p(f"buffer_load_dwordx4 {r(KF[0]+4)}, v{KL}, s[4:7], s28 offen offset:512")
    p("s_waitcnt vmcnt(0)")
    for b in range(2):
        qk(b, 0, 0); qk(b, 0, 1)
    for b in range(2):
        for e in range(0, 16, 2): p(f"v_max3_f32 v{M+b}, v{M+b}, v{S[b]+e}, v{S[b]+e+1}")
    p(f"""s_add_u32 s28, s28, 2048
s_sub_u32 s33, s33, 1
s_cmp_lg_u32 s33, 0
s_cbranch_scc1 {n}_fbloop""")
    for b in range(2):
        p(f"v_mov_b32 v{T+2}, v{M+b}")
        p(f"v_permlane32_swap_b32 v{M+b}, v{T+2}")
        p(f"v_max_f32 v{M+b}, v{M+b}, v{T+2}")
    p(f"""s_lshl_b32 s3, s20, 9
v_lshlrev_b32 v{T+2}, 3, v{LN_}
v_add_u32 v{T+3}, s3, v{T+2}
s_xor_b32 s3, s3, 1024
v_add_u32 v{T+2}, s3, v{T+2}
s_barrier
ds_write_b64 v{T+3}, v[{M}:{M+1}]
s_waitcnt lgkmcnt(0)
s_barrier
ds_read_b64 v[{T+4}:{T+5}], v{T+2}
v_max_f32 v{M}, v{M}, v{T+4}
v_max_f32 v{M+1}, v{M+1}, v{T+5}
s_barrier""")
    start_dma()
    dma_stage(str(ASTG))
    dma_stage(str(2*ASTG))
    mainloop("f", True)
    p(f"s_branch {n}_merge")

def gemm_part(p, n):
    def acc(i, t): b = (i * 8 + t) * 4; return b
    XF = 64
    WF = 112
    AR = 128
    VA = 136; VW = 138; PL = 140; VZ = 141; VO = 142; ONE = 144
    T = 152; LN_ = T + 1
    NS = 72
    p(f"""s_setprio {GPRIO}
s_load_dwordx2 s[38:39], s[0:1], 16
s_load_dwordx2 s[40:41], s[0:1], 0
s_load_dwordx2 s[42:43], s[0:1], 56
s_and_b32 s24, s2, 1
s_bfe_u32 s21, s2, 0x20001
s_lshl_b32 s21, s21, 2
s_bfe_u32 s3, s2, 0x20003
s_add_u32 s21, s21, s3
s_bfe_u32 s22, s2, 0x30005
v_lshrrev_b32 v{T+2}, 4, v{LN_}
v_bfe_u32 v{T+3}, v{LN_}, 1, 3
v_xor_b32 v{T+3}, v{T+3}, v{T+2}
v_and_b32 v{T+4}, 1, v{LN_}
v_lshl_or_b32 v{T+3}, v{T+3}, 1, v{T+4}
v_lshlrev_b32 v{VW}, 11, v{T+2}
v_lshl_add_u32 v{VW}, v{T+3}, 4, v{VW}
s_lshl_b32 s3, s20, 14
s_lshl_b32 s25, s22, 8
s_add_u32 s3, s3, s25
v_add_u32 v{VW}, s3, v{VW}
v_xor_b32 v{VW+1}, 128, v{VW}
v_add_u32 v{VW+1}, 8192, v{VW+1}
s_mul_i32 s25, s24, {56*65536}
s_lshl_b32 s29, s20, 11
s_lshl_b32 s3, s21, 3
s_lshl_b32 s26, s20, 1
s_add_u32 s23, s3, s26
s_mul_i32 s3, s23, {ACT_T}
s_add_u32 s3, s3, {ACT_OFF + 32*1024}
s_mul_i32 s26, s24, {56*1024}
s_add_u32 s3, s3, s26
v_lshlrev_b32 v{T+5}, 4, v{LN_}
v_add_u32 v{VA}, s3, v{T+5}
v_add_u32 v{VA+1}, {ACT_T}, v{VA}
s_mov_b32 s26, 0
s_waitcnt lgkmcnt(0)""")
    srd(p, 4, "s34", "s35", hex(WS_BYTES))
    srd(p, 8, "s36", "s37", hex(3584 * 2048))
    def ldw(slot, j):
        p(f"s_add_u32 m0, s29, {slot*8192 + j*1024}")
        return f"buffer_load_dwordx4 v{VW+j}, s[8:11], s25 offen lds"
    def ldx(slot, i, coh=False):
        b = XF + slot * 8 + i * 4
        return f"buffer_load_dwordx4 {r(b)}, v{VA+i}, s[4:7], s26 offen" + (" sc1" if coh else "")
    def adv():
        p("s_add_u32 s25, s25, 65536")
        p("s_add_u32 s26, s26, 1024")
    for s in range(5):
        for j in range(2): p(ldw(s, j))
        for i in range(2): p(ldx(s, i))
        adv()
    p(f"""v_bfe_u32 v{T+3}, v{LN_}, 2, 2
v_lshl_add_u32 v{T+3}, v{T+2}, 2, v{T+3}
v_and_b32 v{T+4}, 7, v{T+3}
s_lshl_b32 s3, s24, 2
v_xor_b32 v{T+4}, s3, v{T+4}
v_and_b32 v{T+6}, 3, v{LN_}
v_lshlrev_b32 v{T+3}, 8, v{T+3}
v_lshl_add_u32 v{T+3}, v{T+6}, 3, v{T+3}""")
    for t in range(8):
        p(f"v_xor_b32 v{T+6}, {t}, v{T+4}")
        p(f"v_lshl_add_u32 v{AR+t}, v{T+6}, 5, v{T+3}")
    for x in range(64): p(f"v_mov_b32 v{x}, 0")
    srd(p, 12, "s40", "s41", hex(4 << 20))
    srd(p, 16, "s42", "s43", hex(4 << 20))
    p(f"""s_lshl_b32 s44, s21, 1
s_add_u32 s44, s44, s24
s_lshl_b32 s44, s44, 2
s_add_u32 s44, s44, s20
s_lshl_b32 s44, s44, 7
s_add_u32 s44, s44, {FLAG_OFF}
s_lshl_b32 s45, s21, 3
s_add_u32 s45, s45, s22
s_lshl_b32 s45, s45, 1
s_add_u32 s45, s45, s24
s_lshl_b32 s45, s45, 2
s_add_u32 s45, s45, s20
v_mov_b32 v{VZ}, 0
v_mov_b32 v{ONE}, 1
v_and_b32 v{VO}, 15, v{LN_}
v_lshlrev_b32 v{VO}, 11, v{VO}
v_lshl_add_u32 v{VO}, v{T+2}, 3, v{VO}
s_lshl_b32 s3, s23, 15
s_lshl_b32 s46, s22, 8
s_add_u32 s3, s3, s46
s_lshl_b32 s46, s24, 7
s_add_u32 s3, s3, s46
v_add_u32 v{VO}, s3, v{VO}
v_add_u32 v{VO+1}, 32768, v{VO}""")
    def rdw(slot, t):
        b = WF + (t & 3) * 4
        p(f"ds_read_b64_tr_b16 {r(b,2)}, v{AR+t} offset:{slot*8192}")
        p(f"ds_read_b64_tr_b16 {r(b+2,2)}, v{AR+t} offset:{slot*8192+4096}")
    p("s_waitcnt vmcnt(18)")
    p("s_barrier")
    stamp(p, 1)
    for t in range(3): rdw(0, t)
    def spin(tag, addr, val):
        p(f"""v_readfirstlane_b32 s3, v{PL}
s_cmp_ge_u32 s3, {val}
s_cbranch_scc1 {n}_{tag}_ok
{n}_{tag}_spin:
s_sleep 2
buffer_load_dword v{PL}, v{VZ}, s[4:7], {addr} offen sc1
s_waitcnt vmcnt(0)
v_readfirstlane_b32 s3, v{PL}
s_cmp_lt_u32 s3, {val}
s_cbranch_scc1 {n}_{tag}_spin
{n}_{tag}_ok:""")
    def step(s, q, vm, last=False, pre=None, coh=False):
        p(f"s_waitcnt vmcnt({vm})")
        if pre: pre()
        if not last: p("s_barrier")
        ls = (s + 5) % 6
        q = list(q)
        for t in range(8):
            b = WF + (t & 3) * 4
            for i in range(2):
                pend = None
                if i == 0 and q:
                    kind, idx = q.pop(0)
                    pend = ldw(ls, idx) if kind == "w" else (ldx(ls, idx, coh) if kind == "x" else idx)
                a = acc(i, t); xb = XF + s * 8 + i * 4
                p(f"v_mfma_f32_16x16x32_bf16 {r(a)}, {r(b)}, {r(xb)}, {r(a)}")
                if pend: p(pend)
                if i == 1:
                    if t + 3 < 8: rdw(s, t + 3)
                    elif not last: rdw((s + 1) % 6, t + 3 - 8)
    Q4 = [("w", 0), ("w", 1), ("x", 0), ("x", 1)]
    p("s_mov_b32 s30, 8")
    p(f"{n}_gloop:")
    if GSCHED:
        for k, it in enumerate(GSCHED.split(",")):
            pr, rem = it.split(":")
            p(f"""s_cmp_lg_u32 s30, {rem}
s_cbranch_scc1 {n}_gp{k}
s_setprio {pr}
{n}_gp{k}:""")
    for s in range(6):
        step(s, Q4, 14); adv()
    p(f"""s_sub_u32 s30, s30, 1
s_cmp_lg_u32 s30, 0
s_cbranch_scc1 {n}_gloop""")
    hist = []
    for L in range(48, 53): hist += [("w", L), ("w", L), ("x", L), ("x", L)]
    def vmfor(tags):
        last = max(i for i, h in enumerate(hist) if h in tags)
        return len(hist) - 1 - last
    def sw():
        spin("o", "s44", 16)
        stamp(p, 2)
        p(f"""s_mov_b32 s8, s38
s_and_b32 s9, s39, 0xffff
s_mov_b32 s10, {1024*2048}
s_lshl_b32 s25, s24, 20
s_mul_i32 s3, s24, {40*1024}
s_add_u32 s3, s3, {88*1024}
v_subrev_u32 v{VA}, s3, v{VA}
v_subrev_u32 v{VA+1}, s3, v{VA+1}""")
    for s in range(48, NS):
        L = s + 5
        need = [("x", s)] + ([("w", s + 1)] if s + 1 < NS else [])
        if s == 51: need.append(("poll", 0))
        vm = vmfor(need)
        q = []
        if s == 48:
            q.append(("i", f"buffer_load_dword v{PL}, v{VZ}, s[4:7], s44 offen sc1")); hist.append(("poll", 0))
        if L < NS:
            q += Q4; hist += [("w", L), ("w", L), ("x", L), ("x", L)]
        elif L < NS + 2:
            ii = L - NS
            for t in range(4):
                b = XF + (L % 6) * 8 + t * 2
                q.append(("i", f"buffer_load_dwordx2 {r(b,2)}, v{VO+ii}, s[12:15], 0 offen offset:{t*32}")); hist.append(("r", ii))
        step(s % 6, q, vm, last=(s == NS - 1), pre=sw if s == 51 else None, coh=(L >= 56))
        if L < NS: adv()
    stamp(p, 3)
    p(f"""s_lshl_b32 s3, s45, 13
s_add_u32 s3, s3, {PART_OFF}
s_xor_b32 s46, s3, {4<<13}
s_add_u32 s47, s3, 4096
s_lshl_b32 s48, s45, 6
s_add_u32 s48, s48, {FLAG_OFF + 65536}
s_xor_b32 s49, s48, {4<<6}
s_add_u32 s50, s46, 4096""")
    for i in range(2):
        for t in range(4):
            p(f"buffer_store_dwordx4 {r(acc(i,4+t))}, v{T+5}, s[4:7], {'s3' if i == 0 else 's47'} offen offset:{t*1024} sc1")
    XR = XF
    p("s_waitcnt vmcnt(8)")
    for i in range(2):
        for t in range(4):
            a = acc(i, t); xr = XR + i * 8 + t * 2; tq = WF + (t & 1) * 4
            p(f"""v_lshlrev_b32 v{tq}, 16, v{xr}
v_and_b32 v{tq+1}, 0xffff0000, v{xr}
v_lshlrev_b32 v{tq+2}, 16, v{xr+1}
v_and_b32 v{tq+3}, 0xffff0000, v{xr+1}
v_pk_add_f32 {r(a,2)}, {r(a,2)}, {r(tq,2)}
v_pk_add_f32 {r(a+2,2)}, {r(a+2,2)}, {r(tq+2,2)}""")
    p(f"""s_mov_b64 exec, 1
s_waitcnt vmcnt(0)
buffer_atomic_add v{ONE}, v{VZ}, s[4:7], s48 offen sc1
s_mov_b64 exec, -1
buffer_load_dword v{PL}, v{VZ}, s[4:7], s49 offen sc1
s_waitcnt vmcnt(0)""")
    spin("p", "s49", 1)
    PB = XF + 16
    for i in range(2):
        for t in range(4):
            p(f"buffer_load_dwordx4 {r(PB+(i*4+t)*4)}, v{T+5}, s[4:7], {'s46' if i == 0 else 's50'} offen offset:{t*1024} sc1")
    for i in range(2):
        for t in range(4):
            a = acc(i, t); b = PB + (i * 4 + t) * 4; o = XF + (i * 4 + t) * 2
            p(f"s_waitcnt vmcnt({7})")
            p(f"""v_pk_add_f32 {r(a,2)}, {r(a,2)}, {r(b,2)}
v_pk_add_f32 {r(a+2,2)}, {r(a+2,2)}, {r(b+2,2)}
v_cvt_pk_bf16_f32 v{o}, v{a}, v{a+1}
v_cvt_pk_bf16_f32 v{o+1}, v{a+2}, v{a+3}
buffer_store_dwordx2 {r(o,2)}, v{VO+i}, s[16:19], 0 offen offset:{t*32}""")
    stamp(p, 4)
    stamp_out(p, 5, 0, "s20", 2)
    p("s_endpgm")

def gen_k2():
    p = Prog(); n = "k2_kernel"; header(p, n)
    p(f"""s_load_dwordx2 s[34:35], s[0:1], 72
s_load_dwordx2 s[36:37], s[0:1], 48
s_cmp_ge_u32 s2, 768
s_cbranch_scc1 {n}_end""")
    stamp(p, 0)
    p(f"""v_lshrrev_b32 v152, 6, v0
v_and_b32 v153, 63, v0
v_readfirstlane_b32 s20, v152
s_lshr_b32 s3, s2, 8
s_cmp_eq_u32 s3, 1
s_cbranch_scc1 {n}_gemm""")
    if os.environ.get("ONLY") == "g": p("s_endpgm")
    attn_part(p, n)
    p(f"{n}_gemm:")
    if os.environ.get("ONLY") == "a": p("s_endpgm")
    gemm_part(p, n)
    p(f"{n}_end:")
    p("s_endpgm")
    return p.finalize() + descriptor(n, 168, 168), f"; @launch kernel={n} grid=(768,1,1) block=(256,1,1) lds={K2_LDS}"

def parts():
    r_ = [gen_k2()]
    return r_
```

```python
import sys, struct
sys.path.insert(0, "dev")
from asmlib import Prog

NAME = "parallel_sum__mha_block__glu_gated_swiglu__prompt"
XN_OFF = 0
QKV_OFF = 4 << 20
ACT_OFF = 16 << 20
ACT_T = 144 * 1024
WS_BYTES = 268435456
FLAG_OFF = 60 << 20
LOG2E = 1.4426950408889634
def f2u(f): return struct.unpack("<I", struct.pack("<f", f))[0]
def hx(f): return "0x%08x" % f2u(f)

def header(p, name):
    p(f""".text
.globl {name}
.p2align 8
.type {name},@function
{name}:""")

def descriptor(name, nvgpr, accum):
    return f""".section .rodata,"a"
.p2align 6
.amdhsa_kernel {name}
  .amdhsa_next_free_vgpr {nvgpr}
  .amdhsa_next_free_sgpr 102
  .amdhsa_accum_offset {accum}
  .amdhsa_group_segment_fixed_size 0
  .amdhsa_kernarg_size 80
  .amdhsa_user_sgpr_count 2
  .amdhsa_user_sgpr_kernarg_segment_ptr 1
  .amdhsa_system_sgpr_workgroup_id_x 1
.end_amdhsa_kernel
"""

def srd(p, s, lo, hi, nrec):
    p(f"s_mov_b32 s{s}, {lo}")
    p(f"s_and_b32 s{s+1}, {hi}, 0xffff")
    p(f"s_mov_b32 s{s+2}, {nrec}")
    p(f"s_mov_b32 s{s+3}, 0x00020000")

import os
DBG = int(os.environ.get("DBG", "0"))
def stamp(p, k):
    if DBG:
        p(f"s_memtime s[{80+2*k}:{81+2*k}]")
        if k == 0: p("s_memrealtime s[96:97]")
        p("s_waitcnt lgkmcnt(0)")
def stamp_out(p, nst, vt, wavesgpr, kidx=0):
    if not DBG: return
    p(f"""s_memrealtime s[98:99]
s_load_dwordx2 s[4:5], s[0:1], 72
s_getreg_b32 s6, hwreg(HW_REG_HW_ID)
s_getreg_b32 s7, hwreg(HW_REG_XCC_ID)
s_waitcnt lgkmcnt(0)""")
    srd(p, 8, "s4", "s5", hex(WS_BYTES))
    for k in range(1, nst): p(f"s_sub_u32 s{80+2*k}, s{80+2*k}, s80")
    p("s_and_b32 s6, s6, 0xffff")
    p("s_lshl_b32 s7, s7, 16")
    p("s_or_b32 s6, s6, s7")
    p(f"v_mov_b32 v{vt}, s96")
    p(f"v_mov_b32 v{vt+1}, s98")
    p(f"v_mov_b32 v{vt+2}, s6")
    ks = list(range(1, nst))[-5:]
    for i in range(5):
        p(f"v_mov_b32 v{vt+3+i}, " + (f"s{80+2*ks[i]}" if i < len(ks) else "0"))
    p(f"""s_lshl_b32 s3, s2, 5
s_add_u32 s3, s3, {(192<<20) + kidx*65536}
s_cmp_eq_u32 {wavesgpr}, 0
s_cselect_b32 s3, s3, {WS_BYTES}
v_mov_b32 v{vt+8}, 0
s_nop 3
buffer_store_dwordx4 v[{vt}:{vt+3}], v{vt+8}, s[8:11], s3 offen
buffer_store_dwordx4 v[{vt+4}:{vt+7}], v{vt+8}, s[8:11], s3 offen offset:16""")

def gen_ln():
    p = Prog(); n = "ln_kernel"; header(p, n)
    p(f"""s_cmp_ge_u32 s2, 256
s_cbranch_scc1 {n}_end
s_load_dwordx2 s[4:5], s[0:1], 0
s_load_dwordx2 s[6:7], s[0:1], 72
v_and_b32 v1, 63, v0
v_lshrrev_b32 v2, 6, v0
v_and_b32 v3, 7, v1
v_lshrrev_b32 v4, 3, v1
s_waitcnt lgkmcnt(0)""")
    srd(p, 8, "s4", "s5", hex(2048 * 1024 * 2))
    srd(p, 12, "s6", "s7", hex(WS_BYTES))
    p(f"""s_lshl_b32 s3, s2, 14
v_lshlrev_b32 v5, 11, v3
v_lshl_add_u32 v5, v2, 9, v5
v_lshl_add_u32 v5, v4, 4, v5""")
    for i in range(4):
        p(f"buffer_load_dwordx4 v[{8+4*i}:{11+4*i}], v5, s[8:11], s3 offen offset:{128*i}")
    p(f"""v_and_b32 v6, 3, v4
v_lshrrev_b32 v7, 2, v4
v_lshlrev_b32 v60, 13, v2
v_lshl_add_u32 v60, v7, 10, v60
v_lshl_add_u32 v60, v6, 8, v60
v_lshl_add_u32 v60, v3, 4, v60
s_lshr_b32 s16, s2, 1
s_lshl_b32 s16, s16, 15
s_and_b32 s17, s2, 1
s_lshl_b32 s17, s17, 7
s_add_u32 s16, s16, s17
v_lshlrev_b32 v61, 4, v3
v_lshl_add_u32 v62, v2, 2, v61
v_lshlrev_b32 v68, 2, v0
v_mov_b32 v69, 0
s_lshl_b32 s18, s2, 10
s_add_u32 s18, s18, {FLAG_OFF}
buffer_store_dword v69, v68, s[12:15], s18 offen
s_waitcnt vmcnt(1)""")
    for i in range(16):
        p(f"v_lshlrev_b32 v{24+2*i}, 16, v{8+i}")
        p(f"v_and_b32 v{25+2*i}, 0xffff0000, v{8+i}")
    def reduce(dst, ldsoff):
        p(f"""v_add_f32_dpp v{dst}, v{dst}, v{dst} row_ror:8 row_mask:0xf bank_mask:0xf
v_mov_b32 v63, v{dst}
v_permlane16_swap_b32 v{dst}, v63
v_add_f32 v{dst}, v{dst}, v63
v_mov_b32 v63, v{dst}
v_permlane32_swap_b32 v{dst}, v63
v_add_f32 v{dst}, v{dst}, v63
ds_write_b32 v62, v{dst} offset:{ldsoff}
s_waitcnt lgkmcnt(0)
s_barrier
ds_read_b128 v[64:67], v61 offset:{ldsoff}
v_add_f32 v64, v64, v65
v_add_f32 v66, v66, v67
v_add_f32 v{dst}, v64, v66""")
    p("v_pk_add_f32 v[56:57], v[24:25], v[26:27]")
    for i in range(2, 16):
        p(f"v_pk_add_f32 v[56:57], v[56:57], v[{24+2*i}:{25+2*i}]")
    p("v_add_f32 v56, v56, v57")
    reduce(56, 0)
    p(f"v_mul_f32 v56, {hx(1.0/1024)}, v56")
    p("v_mov_b32 v58, 0")
    p("v_mov_b32 v59, 0")
    for i in range(32):
        p(f"v_sub_f32 v{8+(i&7)}, v{24+i}, v56")
        p(f"v_fmac_f32 v{58+(i&1)}, v{8+(i&7)}, v{8+(i&7)}")
    p("v_add_f32 v58, v58, v59")
    reduce(58, 128)
    p(f"""v_mul_f32 v58, {hx(1.0/1024)}, v58
v_cvt_pk_bf16_f32 v57, v56, v58
v_lshlrev_b32 v56, 16, v57
v_and_b32 v58, 0xffff0000, v57
v_add_f32 v58, {hx(1e-5)}, v58
v_cvt_pk_bf16_f32 v58, v58, v58
v_and_b32 v58, 0xffff0000, v58
v_sqrt_f32 v58, v58
v_cvt_pk_bf16_f32 v58, v58, v58
v_and_b32 v58, 0xffff0000, v58
v_rcp_f32 v58, v58""")
    for i in range(16):
        a, b = 24 + 2 * i, 25 + 2 * i
        p(f"""v_sub_f32 v{a}, v{a}, v56
v_sub_f32 v{b}, v{b}, v56
v_cvt_pk_bf16_f32 v{8+i}, v{a}, v{b}
v_lshlrev_b32 v{a}, 16, v{8+i}
v_and_b32 v{b}, 0xffff0000, v{8+i}
v_mul_f32 v{a}, v{a}, v58
v_mul_f32 v{b}, v{b}, v58
v_cvt_pk_bf16_f32 v{8+i}, v{a}, v{b}""")
    for i in range(4):
        p(f"buffer_store_dwordx4 v[{8+4*i}:{11+4*i}], v60, s[12:15], s16 offen offset:{2048*(i&1)}")
        if i == 1: p("s_add_u32 s16, s16, 4096")
    p(f"{n}_end:")
    p("s_endpgm")
    return p.finalize() + descriptor(n, 72, 72), f"; @launch kernel={n} grid=(256,1,1) block=(256,1,1) lds=256"

STG = 36864
def gen_g1():
    p = Prog(); n = "g1_kernel"; header(p, n)
    def acc(i, j):
        if i < 5: b = (i * 10 + j) * 4; return f"v[{b}:{b+3}]"
        b = ((i - 5) * 10 + j) * 4; return f"a[{b}:{b+3}]"
    def xf(buf, i): b = 120 + buf * 32 + i * 4; return f"a[{b}:{b+3}]"
    def wf(j): return 184 + (j % 5) * 4
    VX, VP, VS, AX, AP, AS = 200, 204, 208, 209, 211, 219
    p(f"""s_cmp_ge_u32 s2, 256
s_cbranch_scc1 {n}_end""")
    stamp(p, 0)
    p(f"""s_load_dwordx2 s[32:33], s[0:1], 8
s_load_dwordx4 s[36:39], s[0:1], 32
s_load_dwordx2 s[34:35], s[0:1], 72
s_load_dwordx2 s[66:67], s[0:1], 48
s_load_dwordx2 s[68:69], s[0:1], 16
v_lshrrev_b32 v221, 6, v0
v_and_b32 v222, 63, v0
v_readfirstlane_b32 s20, v221
s_and_b32 s21, s2, 7
s_lshl_b32 s21, s21, 2
s_lshr_b32 s3, s2, 3
s_and_b32 s3, s3, 3
s_add_u32 s21, s21, s3
s_lshr_b32 s22, s2, 5""")
    p("""s_mul_i32 s40, s21, 10
s_cmp_eq_u32 s21, 9
s_cselect_b32 s41, 1, 0
s_cmp_ge_u32 s21, 10
s_cselect_b32 s42, 1, 0
s_sub_u32 s45, s21, 10
s_lshr_b32 s46, s45, 1
s_mul_i32 s46, s46, 10
s_and_b32 s45, s45, 1
s_lshl_b32 s43, s45, 2
s_add_u32 s43, s43, s46
s_add_u32 s44, s46, 8
s_add_u32 s44, s44, s45""")
    def pair_info(hi, side, d_gu, d_blk):
        p(f"""s_or_b32 s47, s41, s42
s_cmp_lg_u32 {hi}, 0
s_cselect_b32 {d_gu}, s47, s42""")
        p(f"""s_cmp_lg_u32 s41, 0
s_cselect_b32 s47, 2, 4
s_mul_i32 s47, s47, {side}
s_lshl_b32 s48, {hi}, 1
s_add_u32 s47, s47, s48
s_add_u32 s47, s47, s40""")
        p(f"""s_add_u32 s48, s48, s43
s_cmp_lg_u32 s41, 0
s_cselect_b32 s48, 110, s48
s_cmp_lg_u32 {d_gu}, 0
s_cselect_b32 {d_blk}, s48, s47""")
    def single_info(side, d_gu, d_blk):
        p(f"""s_mov_b32 {d_gu}, s42
s_cmp_lg_u32 s41, 0
s_cselect_b32 s47, 4, 8
s_add_u32 s47, s47, s40
s_add_u32 s47, s47, {side}
s_cmp_lg_u32 s42, 0
s_cselect_b32 {d_blk}, s44, s47""")
    p("""s_and_b32 s50, s20, 1
s_lshr_b32 s51, s20, 1""")
    pair_info("s50", "s51", "s52", "s53")
    single_info("s51", "s54", "s55")
    p("s_waitcnt lgkmcnt(0)")
    def wsrd(s, gu, blk, pitch):
        p(f"""s_cmp_lg_u32 s51, 0
s_cselect_b32 s47, s38, s36
s_cselect_b32 s48, s39, s37
s_cmp_lg_u32 {gu}, 0
s_cselect_b32 s47, s47, s32
s_cselect_b32 s48, s48, s33
s_cselect_b32 {pitch}, 7, 6
s_lshl_b32 {pitch}, {pitch}, 10
s_lshl_b32 s49, {blk}, 6
s_add_u32 s{s}, s47, s49
s_addc_u32 s{s+1}, s48, 0
s_and_b32 s{s+1}, s{s+1}, 0xffff
s_lshl_b32 s{s+2}, {pitch}, 10
s_sub_u32 s{s+2}, s{s+2}, s49
s_mov_b32 s{s+3}, 0x00020000""")
    wsrd(8, "s52", "s53", "s56")
    wsrd(12, "s54", "s55", "s57")
    srd(p, 4, "s34", "s35", hex(4 << 20))
    srd(p, 16, "s34", "s35", hex(WS_BYTES))
    p("""s_lshl_b32 s26, s56, 5
s_lshl_b32 s27, s57, 5
s_mov_b32 s23, 0
s_mov_b32 s24, 0
s_mov_b32 s25, 0
s_lshl_b32 s29, s20, 12
s_lshl_b32 s31, s20, 10""")
    p(f"""s_lshl_b32 s3, s22, 4
s_lshl_b32 s47, s20, 2
s_add_u32 s3, s3, s47
s_lshl_b32 s3, s3, 15
v_lshlrev_b32 v223, 4, v222
v_add_u32 v{VX}, s3, v223""")
    for j in range(1, 4): p(f"v_add_u32 v{VX+j}, {32768*j}, v{VX}")
    p(f"""v_lshrrev_b32 v224, 3, v222
v_and_b32 v225, 7, v222
v_lshrrev_b32 v226, 1, v225
v_bfe_u32 v227, v224, 1, 1
v_xor_b32 v226, v226, v227
v_and_b32 v225, 1, v225
v_mul_lo_u32 v228, v224, s56
s_lshl_b32 s47, s56, 3""")
    for o in range(4):
        p(f"""v_xor_b32 v229, {2*(o&1)}, v226
v_lshl_or_b32 v229, v229, 1, v225
v_lshl_add_u32 v{VP+o}, v229, 4, v228""")
        if o < 3: p("v_add_u32 v228, s47, v228")
    p(f"""v_lshrrev_b32 v224, 2, v222
s_lshl_b32 s47, s50, 4
v_add_u32 v224, s47, v224
v_mul_lo_u32 v228, v224, s57
v_and_b32 v225, 3, v222
v_lshrrev_b32 v226, 5, v222
v_lshlrev_b32 v226, 1, v226
v_xor_b32 v225, v225, v226
v_lshl_add_u32 v{VS}, v225, 4, v228""")
    def dma(slot, idx):
        if idx < 4:
            p(f"s_add_u32 m0, s29, {slot*STG + idx*1024}")
            p(f"buffer_load_dwordx4 v{VX+idx}, s[4:7], s23 offen lds")
        elif idx < 8:
            p(f"s_add_u32 m0, s29, {slot*STG + 16384 + (idx-4)*1024}")
            p(f"buffer_load_dwordx4 v{VP+idx-4}, s[8:11], s24 offen lds")
        else:
            p(f"s_add_u32 m0, s31, {slot*STG + 32768}")
            p(f"buffer_load_dwordx4 v{VS}, s[12:15], s25 offen lds")
    def adv():
        p("""s_add_u32 s23, s23, 1024
s_add_u32 s24, s24, s26
s_add_u32 s25, s25, s27""")
    DORD = [4, 5, 6, 7, 8, 0, 1, 2, 3]
    for s in range(3):
        for idx in DORD: dma(s, idx)
        adv()
    srd(p, 72, "s66", "s67", hex(3584 * 2048))
    p(f"""s_and_b32 s69, s69, 0xffff
s_lshl_b32 s3, s2, 2
s_add_u32 s3, s3, s20
s_mul_i32 s3, s3, 1280
v_lshlrev_b32 v232, 7, v222
v_add_u32 v232, s3, v232
v_mov_b32 v233, 0x40000000
v_cmp_gt_u32 vcc, 10, v222
v_cndmask_b32 v232, v233, v232, vcc
buffer_load_dword v233, v232, s[72:75], 0 offen""")
    def touch():
        p(f"""s_cmp_eq_u32 s28, 2
s_cselect_b32 s72, s68, s72
s_cselect_b32 s73, s69, s73
s_cselect_b32 s74, {1024*2048}, s74
s_cselect_b32 s3, -5, 1
s_mul_i32 s3, s3, 1310720
v_add_u32 v232, s3, v232
buffer_load_dword v233, v232, s[72:75], 0 offen""")
    p(f"""s_lshl_b32 s47, s51, 13
v_add_u32 v{AX}, s47, v223
v_add_u32 v{AX+1}, {2*STG}, v{AX}
v_lshrrev_b32 v224, 4, v222
v_bfe_u32 v225, v222, 2, 2
v_and_b32 v226, 3, v222
v_lshl_add_u32 v227, v224, 3, v225
v_lshrrev_b32 v228, 1, v225
v_and_b32 v229, 1, v224
v_lshl_or_b32 v228, v229, 1, v228
v_lshlrev_b32 v230, 7, v227
v_lshl_add_u32 v230, v226, 3, v230
s_lshl_b32 s47, s50, 12
v_add_u32 v230, s47, v230""")
    for t in range(4):
        p(f"""v_xor_b32 v231, {t}, v228
v_lshl_add_u32 v{AP+t}, v231, 5, v230
v_add_u32 v{AP+4+t}, {2*STG}, v{AP+t}""")
    p(f"""v_xor_b32 v229, s50, v229
v_lshlrev_b32 v230, 6, v227
v_lshl_add_u32 v230, v226, 3, v230
v_lshl_add_u32 v230, v229, 5, v230
v_add_u32 v{AS}, 32768, v230
v_add_u32 v{AS+1}, {32768+2*STG}, v230""")
    for r in range(200): p(f"v_mov_b32 v{r}, 0")
    for r in range(120): p(f"v_accvgpr_write_b32 a{r}, 0")
    def rdx(slot, buf, i):
        p(f"ds_read_b128 {xf(buf, i)}, v{AX+(slot>>1)} offset:{(slot&1)*STG + i*1024}")
    def rdw(slot, j):
        t, side = j >> 1, j & 1
        b = wf(j)
        if t < 4:
            off = (slot & 1) * STG + 16384 + side * 8192; a = AP + 4 * (slot >> 1) + t; d = 512
        else:
            off = (slot & 1) * STG + side * 2048; a = AS + (slot >> 1); d = 256
        p(f"ds_read_b64_tr_b16 a[{b}:{b+1}], v{a} offset:{off}")
        p(f"ds_read_b64_tr_b16 a[{b+2}:{b+3}], v{a} offset:{off+d}")
    stamp(p, 1)
    p("s_waitcnt vmcnt(19)")
    p("s_barrier")
    stamp(p, 2)
    for j in range(3): rdw(0, j)
    for i in range(8): rdx(0, 0, i)
    def stage(slot, do_dma, vm, last=False):
        buf = slot & 1
        nslot = (slot + 1) & 3
        if not last:
            p(f"s_waitcnt vmcnt({vm})")
            p("s_barrier")
        dq = list(DORD) if do_dma else []
        for j in range(10):
            for i in range(8):
                b = wf(j)
                p(f"v_mfma_f32_16x16x32_bf16 {acc(i,j)}, a[{b}:{b+3}], {xf(buf,i)}, {acc(i,j)}")
                if i == 0:
                    if j + 3 < 10: rdw(slot, j + 3)
                    elif not last: rdw(nslot, j + 3 - 10)
                if i == 4 and 1 <= j <= 8 and not last: rdx(nslot, buf ^ 1, j - 1)
                if i in (2, 6) and dq: dma((slot + 3) & 3, dq.pop(0))
        if do_dma: adv()
    p("s_mov_b32 s28, 7")
    p(f"{n}_loop:")
    for s in range(4): stage(s, True, 10 if s < 2 else 9)
    touch()
    p(f"""s_sub_u32 s28, s28, 1
s_cmp_lg_u32 s28, 0
s_cbranch_scc1 {n}_loop""")
    stamp(p, 3)
    stage(0, True, 10)
    stage(1, False, 10)
    stage(2, False, 0)
    stage(3, False, 0, last=True)
    stamp(p, 4)
    pair_info("s50", "0", "s60", "s61")
    pair_info("s50", "1", "s60", "s62")
    single_info("0", "s63", "s64")
    single_info("1", "s63", "s65")
    QS = (32 ** -0.5) * LOG2E
    p(f"""s_mov_b32 s70, {hx(-LOG2E)}
s_mov_b32 s71, {hx(-LOG2E)}
s_mov_b32 s72, 1.0
s_mov_b32 s73, 1.0
s_lshl_b32 s66, s22, 4
s_lshl_b32 s47, s51, 3
s_add_u32 s66, s66, s47
s_lshl_b32 s47, s50, 3
v_add_u32 v224, s47, v223
s_nop 7""")
    T0 = 226
    def getacc(i, j, tmp):
        if i < 5: return (i * 10 + j) * 4
        b = ((i - 5) * 10 + j) * 4
        for e in range(4): p(f"v_accvgpr_read_b32 v{tmp+e}, a{b+e}")
        return tmp
    def qkv_group(tiles, blkG, blkU, boff, vo):
        for side, blk in ((0, blkG), (1, blkU)):
            p(f"""s_add_u32 s47, {blk}, {boff}
s_cmp_lt_u32 s47, 32
s_cselect_b32 s76, {hx(QS)}, 1.0
s_mov_b32 s77, s76
s_lshl_b32 s74, s47, 17
s_lshl_b32 s47, s66, 10
s_add_u32 s74, s74, s47
s_add_u32 s74, s74, {QKV_OFF}""")
            for i in range(8):
                o = T0 + 8 + (i & 1) * 4
                for k, t in enumerate(tiles):
                    r = getacc(i, 2 * t + side, T0 + 4 * k)
                    p(f"v_pk_mul_f32 v[{r}:{r+1}], v[{r}:{r+1}], s[76:77]")
                    p(f"v_pk_mul_f32 v[{r+2}:{r+3}], v[{r+2}:{r+3}], s[76:77]")
                    p(f"v_cvt_pk_bf16_f32 v{o+2*k}, v{r}, v{r+1}")
                    p(f"v_cvt_pk_bf16_f32 v{o+2*k+1}, v{r+2}, v{r+3}")
                if len(tiles) == 2: p(f"buffer_store_dwordx4 v[{o}:{o+3}], v{vo}, s[16:19], s74 offen offset:{(i&3)*1024}")
                else: p(f"buffer_store_dwordx2 v[{o}:{o+1}], v{vo}, s[16:19], s74 offen offset:{(i&3)*1024}")
                if i == 3: p("s_add_u32 s74, s74, 4096")
    def gu_group(tiles, blk, boff, vo):
        p(f"""s_add_u32 s47, {blk}, {boff+32}
s_lshl_b32 s74, s47, 10
s_mul_i32 s47, s66, {ACT_T}
s_add_u32 s74, s74, s47
s_add_u32 s74, s74, {ACT_OFF}""")
        for i in range(8):
            o = T0 + 16 + (i & 1) * 4
            for k, t in enumerate(tiles):
                g = getacc(i, 2 * t, T0)
                u = getacc(i, 2 * t + 1, T0 + 4)
                e = T0 + 8 + 4 * (k & 1)
                p(f"v_pk_mul_f32 v[{e}:{e+1}], v[{g}:{g+1}], s[70:71]")
                p(f"v_pk_mul_f32 v[{e+2}:{e+3}], v[{g+2}:{g+3}], s[70:71]")
                for x in range(4): p(f"v_exp_f32 v{e+x}, v{e+x}")
                p(f"v_pk_mul_f32 v[{g}:{g+1}], v[{g}:{g+1}], v[{u}:{u+1}]")
                p(f"v_pk_mul_f32 v[{g+2}:{g+3}], v[{g+2}:{g+3}], v[{u+2}:{u+3}]")
                p(f"v_pk_add_f32 v[{e}:{e+1}], v[{e}:{e+1}], s[72:73]")
                p(f"v_pk_add_f32 v[{e+2}:{e+3}], v[{e+2}:{e+3}], s[72:73]")
                for x in range(4): p(f"v_rcp_f32 v{e+x}, v{e+x}")
                p(f"v_pk_mul_f32 v[{g}:{g+1}], v[{g}:{g+1}], v[{e}:{e+1}]")
                p(f"v_pk_mul_f32 v[{g+2}:{g+3}], v[{g+2}:{g+3}], v[{e+2}:{e+3}]")
                p(f"v_cvt_pk_bf16_f32 v{o+2*k}, v{g}, v{g+1}")
                p(f"v_cvt_pk_bf16_f32 v{o+2*k+1}, v{g+2}, v{g+3}")
            if len(tiles) == 2: p(f"buffer_store_dwordx4 v[{o}:{o+3}], v{vo}, s[16:19], s74 offen")
            else: p(f"buffer_store_dwordx2 v[{o}:{o+1}], v{vo}, s[16:19], s74 offen")
            if i < 7: p(f"s_add_u32 s74, s74, {ACT_T}")
    p(f"""s_cmp_lg_u32 s60, 0
s_cbranch_scc1 {n}_gu_ab""")
    qkv_group((0, 1), "s61", "s62", 0, 223)
    qkv_group((2, 3), "s61", "s62", 1, 223)
    p(f"s_branch {n}_c")
    p(f"{n}_gu_ab:")
    gu_group((0, 1), "s61", 0, 223)
    gu_group((2, 3), "s61", 1, 223)
    p(f"{n}_c:")
    p("s_nop 3")
    p(f"""s_cmp_lg_u32 s63, 0
s_cbranch_scc1 {n}_gu_c""")
    qkv_group((4,), "s64", "s65", 0, 224)
    p(f"s_branch {n}_fin")
    p(f"{n}_gu_c:")
    gu_group((4,), "s64", 0, 224)
    p(f"{n}_fin:")
    stamp(p, 5)
    if DBG: p("s_waitcnt vmcnt(0)")
    stamp(p, 6)
    stamp_out(p, 7, 0, "s20", 1)
    p(f"{n}_end:")
    p("s_endpgm")
    return p.finalize() + descriptor(n, 512, 256), f"; @launch kernel={n} grid=(256,1,1) block=(256,1,1) lds={4*STG}"

def build(parts, path):
    hdr = open(f"cdna_kernels/{NAME}.s.ref").read().split("; Override launch")[0]
    txt = hdr + "\n".join(l for _, l in parts) + "\n" + '.amdgcn_target "amdgcn-amd-amdhsa--gfx950"\n' + "".join(c for c, _ in parts)
    open(path, "w").write(txt)
    print("wrote", path, len(txt))

if __name__ == "__main__":
    parts = [gen_ln(), gen_g1()]
    try:
        import gen2
        parts += gen2.parts()
    except ImportError:
        pass
    build(parts, sys.argv[1] if len(sys.argv) > 1 else f"cdna_kernels/{NAME}.s")
```

```python
import sys, os
sys.path.insert(0, "dev")
from asmlib import Prog
from gen import *

ASTG = 16384
K2_LDS = 49152 + 1024
GPRIO = int(os.environ.get("GPRIO", "0"))
APRIO = os.environ.get("APRIO", "3:16,2:8,1:3")
GSCHED = os.environ.get("GSCHED", "")
XSC = os.environ.get("XSC", "")
TOUCH = os.environ.get("TOUCH", "")
GROLE = int(os.environ.get("GROLE", "1"))
OPRIO = int(os.environ.get("OPRIO", "0"))
HACK = os.environ.get("HACK", "")
FINE = int(os.environ.get("FINE", "0"))
AORD = int(os.environ.get("AORD", "1"))
GORD = int(os.environ.get("GORD", "2"))
def r(b, k=4): return f"v[{b}:{b+k-1}]"

def attn_part(p, n):
    S = [0, 16]; O = [32, 48]; P = [64, 72]; KF = [80, 88]; VF = [96, 104]; L = [112, 116]; Q = [120, 128]
    SEL = 136; VD = 140; AK, AV0, AV1 = 142, 143, 144; BK, BV0, BV1 = 145, 146, 147; NK = 148; NM = 150
    T = 152; LN_ = T + 1; KL = T + 10
    p(f"""s_and_b32 s21, s2, 7
s_lshl_b32 s21, s21, 1
s_bfe_u32 s3, s2, 0x10003
s_add_u32 s21, s21, s3
s_lshr_b32 s41, s2, {8 if GROLE == 2 else 9}
s_lshl_b32 s3, s41, 4
s_add_u32 s21, s21, s3
s_bfe_u32 s22, s2, 0x40004
s_and_b32 s23, s20, 1
s_lshr_b32 s24, s20, 1
s_mov_b32 s40, 0
v_lshlrev_b32 v{VD}, 4, v{LN_}
v_lshrrev_b32 v{T+2}, 4, v{LN_}
v_lshlrev_b32 v{T+3}, 2, v{T+2}
v_xor_b32 v{T+3}, v{T+3}, v{LN_}
v_lshlrev_b32 v{VD+1}, 4, v{T+3}
v_add_u32 v{VD+1}, {32*131072}, v{VD+1}
s_add_u32 s25, s21, 32
s_lshl_b32 s25, s25, 17
s_add_u32 s25, s25, {QKV_OFF}
s_lshl_b32 s26, s24, 16
s_add_u32 s25, s25, s26
s_lshl_b32 s26, s23, 11
s_add_u32 s25, s25, s26
s_lshl_b32 s27, s24, 13
s_add_u32 s27, s27, s26
s_waitcnt lgkmcnt(0)""")
    srd(p, 4, "s34", "s35", hex(WS_BYTES))
    def dma_stage(slot_sgpr):
        p(f"s_add_u32 s3, s27, {slot_sgpr}")
        for kv in range(2):
            p(f"s_add_u32 m0, s3, {kv*4096}")
            p(f"buffer_load_dwordx4 v{VD+kv}, s[4:7], s28 offen lds")
            p(f"buffer_load_dwordx4 v{VD+kv}, s[4:7], s28 offen offset:1024 lds")
        p("s_add_u32 s28, s28, 4096")
    def start_dma():
        p("s_mov_b32 s28, s25")
        dma_stage("0")
    start_dma()
    p(f"""v_bfe_u32 v{T+2}, v{LN_}, 4, 1
v_lshrrev_b32 v{T+3}, 5, v{LN_}
v_and_b32 v{T+4}, 15, v{LN_}
v_lshlrev_b32 v{KL}, 10, v{T+2}
v_lshl_add_u32 v{KL}, v{T+3}, 8, v{KL}
v_lshl_add_u32 v{KL}, v{T+4}, 4, v{KL}
s_lshl_b32 s26, s21, 17
s_add_u32 s26, s26, {QKV_OFF}
s_lshl_b32 s3, s22, 13
s_add_u32 s26, s26, s3
s_lshl_b32 s3, s23, 12
s_add_u32 s26, s26, s3""")
    for b in range(2):
        for x in range(2):
            p(f"buffer_load_dwordx4 {r(Q[b]+4*x)}, v{KL}, s[4:7], s26 offen offset:{b*2048+x*512}")
    dma_stage(str(ASTG))
    if not AORD: dma_stage(str(2*ASTG))
    p(f"""s_lshl_b32 s26, s24, 13
v_add_u32 v{BK}, s26, v{KL}
v_and_b32 v{T+5}, 3, v{LN_}
v_bfe_u32 v{T+6}, v{LN_}, 2, 2
v_xor_b32 v{T+7}, v{T+3}, v{T+5}
v_lshl_add_u32 v{T+7}, v{T+7}, 2, v{T+6}
v_lshlrev_b32 v{BV0}, 8, v{T+5}
v_lshl_add_u32 v{BV0}, v{T+7}, 4, v{BV0}
v_lshl_add_u32 v{BV0}, v{T+2}, 3, v{BV0}
s_add_u32 s26, s26, 4096
v_add_u32 v{BV0}, s26, v{BV0}
v_xor_b32 v{BV1}, 128, v{BV0}
v_bfe_u32 v{T+5}, v{LN_}, 2, 1
v_cmp_eq_u32 vcc, v{T+5}, v{T+2}
v_mov_b32 v{T+6}, 0x3f803f80
v_cndmask_b32 v{SEL}, 0, v{T+6}, vcc
v_mov_b32 v{SEL+1}, v{SEL}
v_mov_b32 v{SEL+2}, v{SEL}
v_mov_b32 v{SEL+3}, v{SEL}""")
    def rdk(buf, areg, kblk):
        p(f"ds_read_b128 {r(KF[buf])}, v{areg} offset:{kblk*2048}")
        p(f"ds_read_b128 {r(KF[buf]+4)}, v{areg} offset:{kblk*2048+512}")
    def rdv(buf, kblk):
        for x in range(2):
            p(f"ds_read_b64_tr_b16 {r(VF[buf]+4*x,2)}, v{AV0} offset:{kblk*2048+x*1024}")
            p(f"ds_read_b64_tr_b16 {r(VF[buf]+4*x+2,2)}, v{AV1} offset:{kblk*2048+x*1024}")
    def qk(b, buf, x):
        c = "0" if x == 0 else r(S[b], 16)
        p(f"v_mfma_f32_32x32x16_bf16 {r(S[b],16)}, {r(KF[buf]+4*x)}, {r(Q[b]+4*x)}, {c}")
    def pv(b, buf, x):
        p(f"v_mfma_f32_32x32x16_bf16 {r(O[b],16)}, {r(VF[buf]+4*x)}, {r(P[b]+4*x)}, {r(O[b],16)}")
    def sm(b, x):
        p(f"v_mfma_f32_16x16x32_bf16 {r(L[b])}, {r(SEL)}, {r(P[b]+4*x)}, {r(L[b])}")
    def ex(b, x, part, sub):
        base = S[b] + 8 * x + 4 * part
        if sub:
            for e in range(4): p(f"v_sub_f32 v{base+e}, v{base+e}, v{NM+b}")
        for e in range(4): p(f"v_exp_f32 v{base+e}, v{base+e}")
    def cv(b, x, part):
        base = S[b] + 8 * x + 4 * part
        for e in range(2): p(f"v_cvt_pk_bf16_f32 v{P[b]+4*x+2*part+e}, v{base+2*e}, v{base+2*e+1}")
    def mainloop(tag, sub):
        for b in range(2):
            for e in range(16): p(f"v_mov_b32 v{O[b]+e}, 0")
            for e in range(4): p(f"v_mov_b32 v{L[b]+e}, 0")
        for e in range(8): p(f"v_mov_b32 v{P[1]+e}, 0")
        for e in range(8): p(f"v_mov_b32 v{VF[1]+e}, 0")
        p(f"s_waitcnt vmcnt({4 if AORD else 8})")
        p("s_barrier")
        if not sub: stamp(p, 1)
        rdk(0, BK, 0)
        if AORD: dma_stage(str(2*ASTG))
        qk(0, 0, 0); qk(0, 0, 1)
        p(f"""s_mov_b32 s29, 0
s_mov_b32 s30, {ASTG}
s_mov_b32 s31, {2*ASTG}
s_mov_b32 s33, 16""")
        p(f"{n}_{tag}loop:")
        if APRIO and not sub:
            for k, it in enumerate(APRIO.split(",")):
                pr, rem = it.split(":")
                p1, p2 = (pr.split("/") * 2)[:2]
                p(f"""s_cmp_lg_u32 s33, {rem}
s_cbranch_scc1 {n}_ap{k}
s_setprio {p1}""")
                if p2 != p1: p(f"""s_cmp_eq_u32 s41, 0
s_cbranch_scc1 {n}_ap{k}
s_setprio {p2}""")
                p(f"{n}_ap{k}:")
        p(f"""v_add_u32 v{AK}, s29, v{BK}
v_add_u32 v{AV0}, s29, v{BV0}
v_add_u32 v{AV1}, s29, v{BV1}
v_add_u32 v{NK}, s30, v{BK}""")
        for kb in range(2):
            cur, nxt = kb & 1, (kb & 1) ^ 1
            rdv(cur, kb)
            for x in range(2):
                qk(1, cur, x)
                ex(0, x, 0, sub)
                pv(1, nxt, x)
                ex(0, x, 1, sub)
                cv(0, x, 0)
                sm(1, x)
                cv(0, x, 1)
                if x == 0:
                    if kb < 1: rdk(nxt, AK, kb + 1)
                    else:
                        p(f"""s_cmp_le_u32 s33, 3
s_cbranch_scc1 {n}_{tag}nodma
s_waitcnt vmcnt(4) lgkmcnt(0)
s_barrier""")
                        dma_stage("s29")
                        p(f"""s_branch {n}_{tag}join
{n}_{tag}nodma:
s_waitcnt vmcnt(0) lgkmcnt(0)
s_barrier
{n}_{tag}join:""")
                        rdk(nxt, NK, 0)
            for x in range(2):
                qk(0, nxt, x)
                ex(1, x, 0, sub)
                pv(0, cur, x)
                ex(1, x, 1, sub)
                cv(1, x, 0)
                sm(0, x)
                cv(1, x, 1)
        p(f"""s_mov_b32 s3, s29
s_mov_b32 s29, s30
s_mov_b32 s30, s31
s_mov_b32 s31, s3
s_sub_u32 s33, s33, 1
s_cmp_lg_u32 s33, 0
s_cbranch_scc1 {n}_{tag}loop""")
        for x in range(2):
            pv(1, 1, x)
            sm(1, x)
    mainloop("a", False)
    p(f"{n}_merge:")
    p("s_setprio 3")
    stamp(p, 2)
    F = T + 12
    p(f"""s_mul_i32 s26, s20, 4608
v_lshlrev_b32 v{T+2}, 4, v{LN_}
v_lshlrev_b32 v{T+3}, 2, v{LN_}
s_xor_b32 s3, s20, 2
s_mul_i32 s3, s3, 4608
v_add_u32 v{T+4}, s3, v{T+2}
v_add_u32 v{T+5}, s3, v{T+3}
v_add_u32 v{T+2}, s26, v{T+2}
v_add_u32 v{T+3}, s26, v{T+3}
s_waitcnt lgkmcnt(0)
s_barrier
s_cmp_lg_u32 s24, 0
s_cbranch_scc1 {n}_h1""")
    def fin(mine, other):
        p("s_nop 7")
        for e in range(4): p(f"ds_write_b128 v{T+2}, {r(O[other]+4*e)} offset:{e*1024}")
        p(f"ds_write_b32 v{T+3}, v{L[other]} offset:4096")
        p(f"""v_bfe_u32 v{F}, v{LN_}, 4, 1
v_mul_u32_u24 v{F}, {ACT_T}, v{F}
v_lshrrev_b32 v{F+1}, 5, v{LN_}
v_lshl_add_u32 v{F}, v{F+1}, 8, v{F}
v_and_b32 v{F+1}, 15, v{LN_}
v_lshl_add_u32 v{F}, v{F+1}, 4, v{F}
s_lshl_b32 s3, s22, 3
s_lshl_b32 s26, s23, 2
s_add_u32 s3, s3, s26
s_add_u32 s3, s3, {2*mine}
s_mul_i32 s3, s3, {ACT_T}
s_lshl_b32 s26, s21, 10
s_add_u32 s3, s3, s26
s_add_u32 s26, s3, {ACT_OFF}
s_waitcnt lgkmcnt(0)
s_barrier""")
        p(f"ds_read_b32 v{S[1]}, v{T+5} offset:4096")
        for e in range(4): p(f"ds_read_b128 {r(S[0]+4*e)}, v{T+4} offset:{e*1024}")
        p(f"""v_add_f32 v{S[1]}, v{S[1]}, v{L[mine]}
v_mov_b32 v{T+7}, {hx(2.0**60)}
v_cmp_nlt_f32 vcc, v{S[1]}, v{T+7}
s_mov_b64 s[36:37], vcc
v_mov_b32 v{T+7}, {hx(2.0**-60)}
v_cmp_ngt_f32 vcc, v{S[1]}, v{T+7}
s_or_b64 s[36:37], s[36:37], vcc
s_cmp_lg_u64 s[36:37], 0
s_cselect_b32 s38, 1, 0
v_mov_b32 v{T+6}, s38
s_lshl_b32 s3, s20, 2
s_add_u32 s3, s3, 49152
v_mov_b32 v{T+7}, s3
ds_write_b32 v{T+7}, v{T+6}
v_rcp_f32 v{S[1]}, v{S[1]}""")
        for e in range(16): p(f"v_add_f32 v{S[0]+e}, v{S[0]+e}, v{O[mine]+e}")
        p("s_waitcnt lgkmcnt(0)")
        p("s_barrier")
        p(f"v_mov_b32 v{T+7}, 49152")
        p(f"ds_read_b128 {r(KF[0])}, v{T+7}")
        for e in range(16): p(f"v_mul_f32 v{S[0]+e}, v{S[0]+e}, v{S[1]}")
        for u in range(2):
            for k2, b in enumerate((4 * u, 4 * u + 2, 8 + 4 * u, 8 + 4 * u + 2)):
                p(f"v_cvt_pk_bf16_f32 v{P[0]+4*u+k2}, v{S[0]+b}, v{S[0]+b+1}")
        p(f"""v_or3_b32 v{KF[0]}, v{KF[0]}, v{KF[0]+1}, v{KF[0]+2}
v_or_b32 v{KF[0]}, v{KF[0]}, v{KF[0]+3}
v_readfirstlane_b32 s38, v{KF[0]}
s_andn2_b32 s38, s38, s40
s_cmp_lg_u32 s38, 0
s_cbranch_scc1 {n}_fallback
buffer_store_dwordx4 {r(P[0])}, v{F}, s[4:7], s26 offen sc1
buffer_store_dwordx4 {r(P[0]+4)}, v{F}, s[4:7], s26 offen offset:512 sc1
s_lshl_b32 s3, s22, 1
s_add_u32 s3, s3, s41
s_lshl_b32 s3, s3, 2
s_lshl_b32 s26, s23, 1
s_add_u32 s3, s3, s26
s_add_u32 s3, s3, {mine}
s_lshl_b32 s3, s3, 7
s_add_u32 s3, s3, {FLAG_OFF}
v_mov_b32 v{F+1}, 1
v_mov_b32 v{F+2}, 0
s_mov_b64 exec, 1
s_waitcnt vmcnt(0)
buffer_atomic_add v{F+1}, v{F+2}, s[4:7], s3 offen sc1
s_mov_b64 exec, -1""")
        stamp(p, 3)
        stamp_out(p, 4, 0, "s20", 2)
        p("s_endpgm")
    fin(0, 1)
    p(f"{n}_h1:")
    fin(1, 0)
    p(f"{n}_fallback:")
    M = NM
    p(f"""s_mov_b32 s40, 1
v_mov_b32 v{M}, 0xff800000
v_mov_b32 v{M+1}, 0xff800000
s_add_u32 s28, s21, 32
s_lshl_b32 s28, s28, 17
s_add_u32 s28, s28, {QKV_OFF}
s_lshl_b32 s3, s24, 16
s_add_u32 s28, s28, s3
s_mov_b32 s33, 32""")
    p(f"{n}_fbloop:")
    p(f"buffer_load_dwordx4 {r(KF[0])}, v{KL}, s[4:7], s28 offen")
    p(f"buffer_load_dwordx4 {r(KF[0]+4)}, v{KL}, s[4:7], s28 offen offset:512")
    p("s_waitcnt vmcnt(0)")
    for b in range(2):
        qk(b, 0, 0); qk(b, 0, 1)
    for b in range(2):
        for e in range(0, 16, 2): p(f"v_max3_f32 v{M+b}, v{M+b}, v{S[b]+e}, v{S[b]+e+1}")
    p(f"""s_add_u32 s28, s28, 2048
s_sub_u32 s33, s33, 1
s_cmp_lg_u32 s33, 0
s_cbranch_scc1 {n}_fbloop""")
    for b in range(2):
        p(f"v_mov_b32 v{T+2}, v{M+b}")
        p(f"v_permlane32_swap_b32 v{M+b}, v{T+2}")
        p(f"v_max_f32 v{M+b}, v{M+b}, v{T+2}")
    p(f"""s_lshl_b32 s3, s20, 9
v_lshlrev_b32 v{T+2}, 3, v{LN_}
v_add_u32 v{T+3}, s3, v{T+2}
s_xor_b32 s3, s3, 1024
v_add_u32 v{T+2}, s3, v{T+2}
s_barrier
ds_write_b64 v{T+3}, v[{M}:{M+1}]
s_waitcnt lgkmcnt(0)
s_barrier
ds_read_b64 v[{T+4}:{T+5}], v{T+2}
v_max_f32 v{M}, v{M}, v{T+4}
v_max_f32 v{M+1}, v{M+1}, v{T+5}
s_barrier""")
    start_dma()
    dma_stage(str(ASTG))
    if not AORD: dma_stage(str(2*ASTG))
    mainloop("f", True)
    p(f"s_branch {n}_merge")

GMAP = int(os.environ.get("GMAP", "0"))
GMAPS = ["""s_and_b32 s24, s2, 1
s_bfe_u32 s21, s2, 0x20001
s_lshl_b32 s21, s21, 2
s_bfe_u32 s3, s2, 0x20003
s_add_u32 s21, s21, s3
s_bfe_u32 s22, s2, 0x30005
s_lshl_b32 s46, s22, 8
s_lshl_b32 s3, s24, 7
s_add_u32 s46, s46, s3""",
"""s_and_b32 s21, s2, 7
s_lshl_b32 s21, s21, 1
s_bfe_u32 s3, s2, 0x10003
s_add_u32 s21, s21, s3
s_bfe_u32 s46, s2, 0x40004
s_lshl_b32 s46, s46, 7""",
"""s_and_b32 s24, s2, 1
s_bfe_u32 s21, s2, 0x20001
s_lshl_b32 s21, s21, 2
s_bfe_u32 s3, s2, 0x20003
s_add_u32 s21, s21, s3
s_bfe_u32 s22, s2, 0x30005
s_lshl_b32 s46, s22, 7
s_lshl_b32 s3, s24, 10
s_add_u32 s46, s46, s3""",
"""s_and_b32 s24, s2, 3
s_bfe_u32 s21, s2, 0x10002
s_lshl_b32 s21, s21, 3
s_bfe_u32 s3, s2, 0x30003
s_add_u32 s21, s21, s3
s_bfe_u32 s22, s2, 0x20006
s_lshl_b32 s46, s22, 7
s_lshl_b32 s3, s24, 9
s_add_u32 s46, s46, s3"""]
def gemm_part(p, n):
    def acc(i, t): return (i * 4 + t) * 4
    XF = 32
    WF = 128
    AR = 144; VA = 148; VW = 150
    T = 152; LN_ = T + 1
    PL = T + 8; VZ = T + 9; VO = T + 10
    NS = 72
    P1 = int(os.environ.get("P1", "51")); P2 = int(os.environ.get("P2", "59"))
    p(f"""s_load_dwordx2 s[38:39], s[0:1], 16
s_load_dwordx2 s[40:41], s[0:1], 0
s_load_dwordx2 s[42:43], s[0:1], 56
{GMAPS[GMAP]}
v_lshrrev_b32 v{T+2}, 4, v{LN_}
v_lshrrev_b32 v{T+3}, 3, v{LN_}
v_bfe_u32 v{T+4}, v{LN_}, 1, 2
v_xor_b32 v{T+4}, v{T+4}, v{T+2}
v_and_b32 v{T+6}, 1, v{LN_}
v_lshl_or_b32 v{T+4}, v{T+4}, 1, v{T+6}
v_lshlrev_b32 v{VW}, 11, v{T+3}
v_lshl_add_u32 v{VW}, v{T+4}, 4, v{VW}
s_lshl_b32 s3, s20, 15
s_add_u32 s3, s3, s46
v_add_u32 v{VW}, s3, v{VW}
v_add_u32 v{VW+1}, 16384, v{VW}
s_mov_b32 s25, 0
s_lshl_b32 s29, s20, 11
s_lshl_b32 s3, s21, 3
s_lshl_b32 s26, s20, 1
s_add_u32 s23, s3, s26
s_mul_i32 s3, s23, {ACT_T}
s_add_u32 s3, s3, {ACT_OFF}
v_lshlrev_b32 v{T+5}, 4, v{LN_}
v_add_u32 v{VA}, s3, v{T+5}
v_add_u32 v{VA+1}, {ACT_T}, v{VA}
s_mov_b32 s26, {32*1024}
v_and_b32 v{VO}, 15, v{LN_}
v_lshlrev_b32 v{VO}, 11, v{VO}
v_lshl_add_u32 v{VO}, v{T+2}, 3, v{VO}
s_lshl_b32 s3, s23, 15
s_add_u32 s3, s3, s46
v_add_u32 v{VO}, s3, v{VO}
v_add_u32 v{VO+1}, 32768, v{VO}
s_waitcnt lgkmcnt(0)""")
    srd(p, 4, "s34", "s35", hex(WS_BYTES))
    srd(p, 8, "s36", "s37", hex(3584 * 2048))
    srd(p, 12, "s40", "s41", hex(4 << 20))
    def ldw(slot, j):
        p(f"s_add_u32 m0, s29, {slot*8192 + j*1024}")
        return f"buffer_load_dwordx4 v{VW+j}, s[8:11], s25 offen lds"
    def ldx(slot, k):
        return f"buffer_load_dwordx4 {r(XF + slot * 16 + k * 4)}, v{VA+(k>>1)}, s[4:7], s26 offen offset:{(k&1)*1024}"
    def advw(): p("s_add_u32 s25, s25, 131072")
    def advx(): p("s_add_u32 s26, s26, 2048")
    XR = XF
    def issue(s):
        for j in range(2): p(ldw(s, j))
        for k in range(4): p(ldx(s, k))
        advw(); advx()
    for s in range(GORD):
        issue(s)
    for x in range(32): p(f"v_mov_b32 v{x}, 0")
    srd(p, 16, "s42", "s43", hex(4 << 20))
    p(f"""s_lshl_b32 s44, s21, 3
s_add_u32 s44, s44, s20
s_lshl_b32 s44, s44, 7
s_add_u32 s44, s44, {FLAG_OFF}
s_add_u32 s52, s44, 512
v_mov_b32 v{VZ}, 0
v_bfe_u32 v{T+3}, v{LN_}, 2, 2
v_lshl_add_u32 v{T+3}, v{T+2}, 2, v{T+3}
v_bfe_u32 v{T+4}, v{T+3}, 1, 2
v_and_b32 v{T+6}, 3, v{LN_}
v_lshlrev_b32 v{T+3}, 7, v{T+3}
v_lshl_add_u32 v{T+3}, v{T+6}, 3, v{T+3}""")
    for t in range(4):
        p(f"v_xor_b32 v{T+6}, {t}, v{T+4}")
        p(f"v_lshl_add_u32 v{AR+t}, v{T+6}, 5, v{T+3}")
    def rdw(slot, t):
        b = WF + (t & 3) * 4; off = slot * 8192 + (t >> 2) * 4096
        p(f"ds_read_b64_tr_b16 {r(b,2)}, v{AR+(t&3)} offset:{off}")
        p(f"ds_read_b64_tr_b16 {r(b+2,2)}, v{AR+(t&3)} offset:{off+2048}")
    p(f"s_waitcnt vmcnt({6*(GORD-1)})")
    p("s_barrier")
    for t in range(3): rdw(0, t)
    for s in range(GORD, 5): issue(s)
    stamp(p, 1)
    def spin(tag, addr, val):
        p(f"""v_readfirstlane_b32 s3, v{PL}
s_cmp_ge_u32 s3, {val}
s_cbranch_scc1 {n}_{tag}_ok
{n}_{tag}_spin:
s_sleep 1
buffer_load_dword v{PL}, v{VZ}, s[4:7], {addr} offen sc1
s_waitcnt vmcnt(0)
v_readfirstlane_b32 s3, v{PL}
s_cmp_lt_u32 s3, {val}
s_cbranch_scc1 {n}_{tag}_spin
{n}_{tag}_ok:""")
    def step(s, q, vm):
        last = s == NS - 1
        p(f"s_waitcnt vmcnt({vm})")
        if not last: p("s_barrier")
        q = list(q)
        for t in range(8):
            b = WF + (t & 3) * 4
            for i in range(2):
                pend = None
                if q and (i == 0 or len(q) > 7 - t):
                    kind, sl, idx = q.pop(0)
                    pend = ldw(sl, idx) if kind == "w" else (ldx(sl, idx) if kind == "x" else idx)
                    if kind == "x" and idx == 3: pend += "\ns_add_u32 s26, s26, 2048"
                    if kind == "w" and idx == 1: pend += "\ns_add_u32 s25, s25, 131072"
                a = acc(i, t & 3); xb = XF + (s % 6) * 16 + i * 8 + (t >> 2) * 4
                p(f"v_mfma_f32_16x16x32_bf16 {r(a)}, {r(b)}, {r(xb)}, {r(a)}")
                if pend: p(pend)
                if i == 1:
                    if t + 3 < 8: rdw(s % 6, t + 3)
                    elif not last: rdw((s + 1) % 6, t + 3 - 8)
        assert not q
    def QW(L): return [("w", L % 6, j) for j in range(2)]
    def QX(L): return [("x", L % 6, k) for k in range(4)]
    p("s_mov_b32 s30, 8")
    p(f"s_setprio {GPRIO}")
    p(f"{n}_gloop:")
    if GSCHED:
        for k, it in enumerate(GSCHED.split(",")):
            pr, rem = it.split(":")
            p(f"""s_cmp_lg_u32 s30, {rem}
s_cbranch_scc1 {n}_gp{k}
s_setprio {pr}
{n}_gp{k}:""")
    if FINE:
        for k, rem in ((2, 8), (3, 6), (4, 4), (5, 2)):
            p(f"s_cmp_lg_u32 s30, {rem}\ns_cbranch_scc1 {n}_fs{k}")
            stamp(p, k)
            p(f"{n}_fs{k}:")
    for s in range(6): step(s, QW(s + 5) + QX(s + 5), 22)
    p(f"""s_sub_u32 s30, s30, 1
s_cmp_lg_u32 s30, 0
s_cbranch_scc1 {n}_gloop""")
    hist = []
    for L in range(48, 53): hist += [("w", L)] * 2 + [("x", L)] * 4
    def vmfor(tags):
        last = max(i for i, h in enumerate(hist) if h in tags)
        return len(hist) - 1 - last
    nx = 53
    for s in range(48, NS):
        L = s + 5
        if L == 56:
            p(f"""s_mov_b32 s8, s38
s_and_b32 s9, s39, 0xffff
s_mov_b32 s10, {1024*2048}
s_mov_b32 s25, 0""")
        for k, (ps, addr) in enumerate(((P1, "s44"), (P2, "s52"))):
            if s == ps:
                if not FINE: stamp(p, 2 + 2 * k)
                elif k == 0: stamp(p, 6)
                p(f"s_waitcnt vmcnt({vmfor([('poll', k)])})")
                spin("o%d" % k, addr, 16)
                if k == 0: p("s_mov_b32 s26, 0")
                if k == 1: p("s_setprio 3")
                if not FINE: stamp(p, 3 + 2 * k)
        lim = min(L, NS - 1, 55 if s < P1 else (63 if s < P2 else NS))
        pre = []
        while nx <= lim - 1 and nx <= lim:
            pre.append(nx); nx += 1
        for x in pre:
            for k in range(4): p(ldx(x % 6, k))
            advx(); hist.extend([("x", x)] * 4)
        need = [("x", s)] + ([("w", s + 1)] if s + 1 < NS else [])
        vm = vmfor(need)
        q = []
        if L < NS: q += QW(L); hist += [("w", L)] * 2
        if nx <= lim: q += QX(nx); hist += [("x", nx)] * 4; nx += 1
        for k, (ps, addr) in enumerate(((P1, "s44"), (P2, "s52"))):
            if s == ps - 2:
                q.append(("i", 0, f"buffer_load_dword v{PL}, v{VZ}, s[4:7], {addr} offen sc1")); hist.append(("poll", k))
        if s == 49:
            q.append(("i", 0, f"buffer_load_dword v{T+12}, v{VO}, s[12:15], 0 offen")); hist.append(("t", 0))
            q.append(("i", 0, f"buffer_load_dword v{T+12}, v{VO+1}, s[12:15], 0 offen")); hist.append(("t", 0))
        if s == 67:
            for i in range(2):
                for t in range(4):
                    q.append(("i", 0, f"buffer_load_dwordx2 {r(XR+i*8+t*2,2)}, v{VO+i}, s[12:15], 0 offen offset:{t*32}")); hist.append(("r", 0))
        if s == 71:
            need.append(("r", 0)); vm = vmfor(need)
            for i in range(2):
                for t in range(4):
                    xr = XR + i * 8 + t * 2; tq = XF + 16 + acc(i, t)
                    q.append(("i", 0, f"""v_lshlrev_b32 v{tq}, 16, v{xr}
v_and_b32 v{tq+1}, 0xffff0000, v{xr}
v_lshlrev_b32 v{tq+2}, 16, v{xr+1}
v_and_b32 v{tq+3}, 0xffff0000, v{xr+1}"""))
        step(s, q, vm)
    for i in range(2):
        for t in range(4):
            a = acc(i, t); xr = XF + i * 8 + t * 2; tq = XF + 16 + a
            p(f"""v_pk_add_f32 {r(a,2)}, {r(a,2)}, {r(tq,2)}
v_pk_add_f32 {r(a+2,2)}, {r(a+2,2)}, {r(tq+2,2)}
v_cvt_pk_bf16_f32 v{xr}, v{a}, v{a+1}
v_cvt_pk_bf16_f32 v{xr+1}, v{a+2}, v{a+3}
buffer_store_dwordx2 {r(xr,2)}, v{VO+i}, s[16:19], 0 offen offset:{t*32}{STO}""")
    if not FINE: stamp(p, 6)
    stamp_out(p, 7, 0, "s20", 2)
    p("s_endpgm")

def gen_k2():
    p = Prog(); n = "k2_kernel"; header(p, n)
    p(f"""s_setprio 3
s_load_dwordx2 s[34:35], s[0:1], 72
s_load_dwordx2 s[36:37], s[0:1], 48
s_cmp_ge_u32 s2, 768
s_cbranch_scc1 {n}_end""")
    stamp(p, 0)
    p(f"""v_lshrrev_b32 v152, 6, v0
v_and_b32 v153, 63, v0
v_readfirstlane_b32 s20, v152
s_lshr_b32 s3, s2, 8
s_cmp_eq_u32 s3, {GROLE}
s_cbranch_scc1 {n}_gemm""")
    if os.environ.get("ONLY") == "g": p("s_endpgm")
    attn_part(p, n)
    p(f"{n}_gemm:")
    if os.environ.get("ONLY") == "a": p("s_endpgm")
    gemm_part(p, n)
    p(f"{n}_end:")
    p("s_endpgm")
    return p.finalize() + descriptor(n, 168, 168), f"; @launch kernel={n} grid=(768,1,1) block=(256,1,1) lds={K2_LDS}"

def parts():
    r_ = [gen_k2()]
    return r_
```

```python
import sys, struct
sys.path.insert(0, "dev")
from asmlib import Prog

NAME = "parallel_sum__mha_block__glu_gated_swiglu__prompt"
XN_OFF = 0
QKV_OFF = 4 << 20
ACT_OFF = 16 << 20
ACT_T = 144 * 1024
WS_BYTES = 268435456
PART_OFF = 40 << 20
FLAG_OFF = 60 << 20
LOG2E = 1.4426950408889634
def f2u(f): return struct.unpack("<I", struct.pack("<f", f))[0]
def hx(f): return "0x%08x" % f2u(f)

def header(p, name):
    p(f""".text
.globl {name}
.p2align 8
.type {name},@function
{name}:""")

def descriptor(name, nvgpr, accum):
    return f""".section .rodata,"a"
.p2align 6
.amdhsa_kernel {name}
  .amdhsa_next_free_vgpr {nvgpr}
  .amdhsa_next_free_sgpr 102
  .amdhsa_accum_offset {accum}
  .amdhsa_group_segment_fixed_size 0
  .amdhsa_kernarg_size 80
  .amdhsa_user_sgpr_count 2
  .amdhsa_user_sgpr_kernarg_segment_ptr 1
  .amdhsa_system_sgpr_workgroup_id_x 1
.end_amdhsa_kernel
"""

def srd(p, s, lo, hi, nrec):
    p(f"s_mov_b32 s{s}, {lo}")
    p(f"s_and_b32 s{s+1}, {hi}, 0xffff")
    p(f"s_mov_b32 s{s+2}, {nrec}")
    p(f"s_mov_b32 s{s+3}, 0x00020000")

import os
DBG = int(os.environ.get("DBG", "0"))
PRO = int(os.environ.get("PRO", "0"))
STM = os.environ.get("STM", "")
STL = os.environ.get("STL", "")
STO = os.environ.get("STO", "")
def stamp(p, k):
    if DBG:
        p(f"s_memtime s[{80+2*k}:{81+2*k}]")
        if k == 0: p("s_memrealtime s[96:97]")
        p("s_waitcnt lgkmcnt(0)")
def stamp_out(p, nst, vt, wavesgpr, kidx=0):
    if not DBG: return
    p(f"""s_memrealtime s[98:99]
s_load_dwordx2 s[4:5], s[0:1], 72
s_getreg_b32 s6, hwreg(HW_REG_HW_ID)
s_getreg_b32 s7, hwreg(HW_REG_XCC_ID)
s_waitcnt lgkmcnt(0)""")
    srd(p, 8, "s4", "s5", hex(WS_BYTES))
    for k in range(1, nst): p(f"s_sub_u32 s{80+2*k}, s{80+2*k}, s80")
    p("s_and_b32 s6, s6, 0xffff")
    p("s_lshl_b32 s7, s7, 16")
    p("s_or_b32 s6, s6, s7")
    p(f"v_mov_b32 v{vt}, s96")
    p(f"v_mov_b32 v{vt+1}, s98")
    p(f"v_mov_b32 v{vt+2}, s6")
    ks = list(range(1, nst))[-5:]
    for i in range(5):
        p(f"v_mov_b32 v{vt+3+i}, " + (f"s{80+2*ks[i]}" if i < len(ks) else "0"))
    p(f"""s_lshl_b32 s3, s2, 5
s_add_u32 s3, s3, {(192<<20) + kidx*65536}
s_cmp_eq_u32 {wavesgpr}, 0
s_cselect_b32 s3, s3, {WS_BYTES}
v_mov_b32 v{vt+8}, 0
s_nop 3
buffer_store_dwordx4 v[{vt}:{vt+3}], v{vt+8}, s[8:11], s3 offen
buffer_store_dwordx4 v[{vt+4}:{vt+7}], v{vt+8}, s[8:11], s3 offen offset:16""")

def gen_ln():
    p = Prog(); n = "ln_kernel"; header(p, n)
    p(f"""s_cmp_ge_u32 s2, 256
s_cbranch_scc1 {n}_end
s_load_dwordx2 s[4:5], s[0:1], 0
s_load_dwordx2 s[6:7], s[0:1], 72
s_load_dwordx2 s[20:21], s[0:1], 8
s_load_dwordx4 s[24:27], s[0:1], 32
v_and_b32 v1, 63, v0
v_lshrrev_b32 v2, 6, v0
v_and_b32 v3, 7, v1
v_lshrrev_b32 v4, 3, v1
s_waitcnt lgkmcnt(0)""")
    srd(p, 8, "s4", "s5", hex(2048 * 1024 * 2))
    srd(p, 12, "s6", "s7", hex(WS_BYTES))
    p(f"""s_lshl_b32 s3, s2, 14
v_lshlrev_b32 v5, 11, v3
v_lshl_add_u32 v5, v2, 9, v5
v_lshl_add_u32 v5, v4, 4, v5""")
    for i in range(4):
        p(f"buffer_load_dwordx4 v[{8+4*i}:{11+4*i}], v5, s[8:11], s3 offen offset:{128*i}")
    p(f"""v_and_b32 v6, 3, v4
v_lshrrev_b32 v7, 2, v4
v_lshlrev_b32 v60, 13, v2
v_lshl_add_u32 v60, v7, 10, v60
v_lshl_add_u32 v60, v6, 8, v60
v_lshl_add_u32 v60, v3, 4, v60
s_lshr_b32 s16, s2, 1
s_lshl_b32 s16, s16, 15
s_and_b32 s17, s2, 1
s_lshl_b32 s17, s17, 7
s_add_u32 s16, s16, s17
v_lshlrev_b32 v61, 4, v3
v_lshl_add_u32 v62, v2, 2, v61
v_lshlrev_b32 v68, 2, v0
v_mov_b32 v69, 0
s_lshl_b32 s18, s2, 10
s_add_u32 s18, s18, {FLAG_OFF}
buffer_store_dword v69, v68, s[12:15], s18 offen""")
    NR = int(os.environ.get("NR", "0"))
    if NR:
        p("v_lshlrev_b32 v70, 7, v0")
        p("s_lshl_b32 s19, s2, 15")
        for k, (lo, pitch) in enumerate(((20, 6144), (24, 7168), (26, 7168))):
            srd(p, 28, f"s{lo}", f"s{lo+1}", hex(NR * pitch))
            p("v_add_u32 v70, s19, v70" if k == 0 else "s_nop 0")
            p("buffer_load_dword v71, v70, s[28:31], 0 offen")
    p(f"s_waitcnt vmcnt({4 if NR else 1})")
    for i in range(16):
        p(f"v_lshlrev_b32 v{24+2*i}, 16, v{8+i}")
        p(f"v_and_b32 v{25+2*i}, 0xffff0000, v{8+i}")
    def reduce(dst, ldsoff):
        p(f"""v_add_f32_dpp v{dst}, v{dst}, v{dst} row_ror:8 row_mask:0xf bank_mask:0xf
v_mov_b32 v63, v{dst}
v_permlane16_swap_b32 v{dst}, v63
v_add_f32 v{dst}, v{dst}, v63
v_mov_b32 v63, v{dst}
v_permlane32_swap_b32 v{dst}, v63
v_add_f32 v{dst}, v{dst}, v63
ds_write_b32 v62, v{dst} offset:{ldsoff}
s_waitcnt lgkmcnt(0)
s_barrier
ds_read_b128 v[64:67], v61 offset:{ldsoff}
v_add_f32 v64, v64, v65
v_add_f32 v66, v66, v67
v_add_f32 v{dst}, v64, v66""")
    p("v_pk_add_f32 v[56:57], v[24:25], v[26:27]")
    for i in range(2, 16):
        p(f"v_pk_add_f32 v[56:57], v[56:57], v[{24+2*i}:{25+2*i}]")
    p("v_add_f32 v56, v56, v57")
    reduce(56, 0)
    p(f"v_mul_f32 v56, {hx(1.0/1024)}, v56")
    p("v_mov_b32 v58, 0")
    p("v_mov_b32 v59, 0")
    for i in range(32):
        p(f"v_sub_f32 v{8+(i&7)}, v{24+i}, v56")
        p(f"v_fmac_f32 v{58+(i&1)}, v{8+(i&7)}, v{8+(i&7)}")
    p("v_add_f32 v58, v58, v59")
    reduce(58, 128)
    p(f"""v_mul_f32 v58, {hx(1.0/1024)}, v58
v_cvt_pk_bf16_f32 v57, v56, v58
v_lshlrev_b32 v56, 16, v57
v_and_b32 v58, 0xffff0000, v57
v_add_f32 v58, {hx(1e-5)}, v58
v_cvt_pk_bf16_f32 v58, v58, v58
v_and_b32 v58, 0xffff0000, v58
v_sqrt_f32 v58, v58
v_cvt_pk_bf16_f32 v58, v58, v58
v_and_b32 v58, 0xffff0000, v58
v_rcp_f32 v58, v58""")
    for i in range(16):
        a, b = 24 + 2 * i, 25 + 2 * i
        p(f"""v_sub_f32 v{a}, v{a}, v56
v_sub_f32 v{b}, v{b}, v56
v_cvt_pk_bf16_f32 v{8+i}, v{a}, v{b}
v_lshlrev_b32 v{a}, 16, v{8+i}
v_and_b32 v{b}, 0xffff0000, v{8+i}
v_mul_f32 v{a}, v{a}, v58
v_mul_f32 v{b}, v{b}, v58
v_cvt_pk_bf16_f32 v{8+i}, v{a}, v{b}""")
    for i in range(4):
        p(f"buffer_store_dwordx4 v[{8+4*i}:{11+4*i}], v60, s[12:15], s16 offen offset:{2048*(i&1)}{STL}")
        if i == 1: p("s_add_u32 s16, s16, 4096")
    p(f"{n}_end:")
    p("s_endpgm")
    return p.finalize() + descriptor(n, 72, 72), f"; @launch kernel={n} grid=(256,1,1) block=(256,1,1) lds=256"

STG = 36864
def gen_g1():
    p = Prog(); n = "g1_kernel"; header(p, n)
    def acc(i, j):
        if i < 5: b = (i * 10 + j) * 4; return f"v[{b}:{b+3}]"
        b = ((i - 5) * 10 + j) * 4; return f"a[{b}:{b+3}]"
    def xf(buf, i): b = 120 + buf * 32 + i * 4; return f"a[{b}:{b+3}]"
    def wf(j): return 184 + (j % 5) * 4
    VX, VP, VS, AX, AP, AS = 200, 204, 208, 209, 211, 219
    p(f"""s_cmp_ge_u32 s2, 256
s_cbranch_scc1 {n}_end""")
    stamp(p, 0)
    p(f"""s_load_dwordx2 s[32:33], s[0:1], 8
s_load_dwordx4 s[36:39], s[0:1], 32
s_load_dwordx2 s[34:35], s[0:1], 72
s_load_dwordx2 s[66:67], s[0:1], 48
s_load_dwordx2 s[68:69], s[0:1], 16
v_lshrrev_b32 v221, 6, v0
v_and_b32 v222, 63, v0
v_readfirstlane_b32 s20, v221
s_and_b32 s21, s2, 7
s_lshl_b32 s21, s21, 2
s_lshr_b32 s3, s2, 3
s_and_b32 s3, s3, 3
s_add_u32 s21, s21, s3
s_lshr_b32 s22, s2, 5""")
    p("""s_mul_i32 s40, s21, 10
s_cmp_eq_u32 s21, 9
s_cselect_b32 s41, 1, 0
s_cmp_ge_u32 s21, 10
s_cselect_b32 s42, 1, 0
s_sub_u32 s45, s21, 10
s_lshr_b32 s46, s45, 1
s_mul_i32 s46, s46, 10
s_and_b32 s45, s45, 1
s_lshl_b32 s43, s45, 2
s_add_u32 s43, s43, s46
s_add_u32 s44, s46, 8
s_add_u32 s44, s44, s45""")
    def pair_info(hi, side, d_gu, d_blk):
        p(f"""s_or_b32 s47, s41, s42
s_cmp_lg_u32 {hi}, 0
s_cselect_b32 {d_gu}, s47, s42""")
        p(f"""s_cmp_lg_u32 s41, 0
s_cselect_b32 s47, 2, 4
s_mul_i32 s47, s47, {side}
s_lshl_b32 s48, {hi}, 1
s_add_u32 s47, s47, s48
s_add_u32 s47, s47, s40""")
        p(f"""s_add_u32 s48, s48, s43
s_cmp_lg_u32 s41, 0
s_cselect_b32 s48, 110, s48
s_cmp_lg_u32 {d_gu}, 0
s_cselect_b32 {d_blk}, s48, s47""")
    def single_info(side, d_gu, d_blk):
        p(f"""s_mov_b32 {d_gu}, s42
s_cmp_lg_u32 s41, 0
s_cselect_b32 s47, 4, 8
s_add_u32 s47, s47, s40
s_add_u32 s47, s47, {side}
s_cmp_lg_u32 s42, 0
s_cselect_b32 {d_blk}, s44, s47""")
    p("""s_and_b32 s50, s20, 1
s_lshr_b32 s51, s20, 1""")
    pair_info("s50", "s51", "s52", "s53")
    single_info("s51", "s54", "s55")
    p("s_waitcnt lgkmcnt(0)")
    if PRO: stamp(p, 2)
    def wsrd(s, gu, blk, pitch):
        p(f"""s_cmp_lg_u32 s51, 0
s_cselect_b32 s47, s38, s36
s_cselect_b32 s48, s39, s37
s_cmp_lg_u32 {gu}, 0
s_cselect_b32 s47, s47, s32
s_cselect_b32 s48, s48, s33
s_cselect_b32 {pitch}, 7, 6
s_lshl_b32 {pitch}, {pitch}, 10
s_lshl_b32 s49, {blk}, 6
s_add_u32 s{s}, s47, s49
s_addc_u32 s{s+1}, s48, 0
s_and_b32 s{s+1}, s{s+1}, 0xffff
s_lshl_b32 s{s+2}, {pitch}, 10
s_sub_u32 s{s+2}, s{s+2}, s49
s_mov_b32 s{s+3}, 0x00020000""")
    wsrd(8, "s52", "s53", "s56")
    wsrd(12, "s54", "s55", "s57")
    srd(p, 4, "s34", "s35", hex(4 << 20))
    srd(p, 16, "s34", "s35", hex(WS_BYTES))
    p("""s_lshl_b32 s26, s56, 5
s_lshl_b32 s27, s57, 5
s_mov_b32 s23, 0
s_mov_b32 s24, 0
s_mov_b32 s25, 0
s_lshl_b32 s29, s20, 12
s_lshl_b32 s31, s20, 10""")
    p(f"""s_lshl_b32 s3, s22, 4
s_lshl_b32 s47, s20, 2
s_add_u32 s3, s3, s47
s_lshl_b32 s3, s3, 15
v_lshlrev_b32 v223, 4, v222
v_add_u32 v{VX}, s3, v223""")
    for j in range(1, 4): p(f"v_add_u32 v{VX+j}, {32768*j}, v{VX}")
    p(f"""v_lshrrev_b32 v224, 3, v222
v_and_b32 v225, 7, v222
v_lshrrev_b32 v226, 1, v225
v_bfe_u32 v227, v224, 1, 1
v_xor_b32 v226, v226, v227
v_and_b32 v225, 1, v225
v_mul_lo_u32 v228, v224, s56
s_lshl_b32 s47, s56, 3""")
    for o in range(4):
        p(f"""v_xor_b32 v229, {2*(o&1)}, v226
v_lshl_or_b32 v229, v229, 1, v225
v_lshl_add_u32 v{VP+o}, v229, 4, v228""")
        if o < 3: p("v_add_u32 v228, s47, v228")
    p(f"""v_lshrrev_b32 v224, 2, v222
s_lshl_b32 s47, s50, 4
v_add_u32 v224, s47, v224
v_mul_lo_u32 v228, v224, s57
v_and_b32 v225, 3, v222
v_lshrrev_b32 v226, 5, v222
v_lshlrev_b32 v226, 1, v226
v_xor_b32 v225, v225, v226
v_lshl_add_u32 v{VS}, v225, 4, v228""")
    def dma(slot, idx):
        if idx < 4:
            p(f"s_add_u32 m0, s29, {slot*STG + idx*1024}")
            p(f"buffer_load_dwordx4 v{VX+idx}, s[4:7], s23 offen lds")
        elif idx < 8:
            p(f"s_add_u32 m0, s29, {slot*STG + 16384 + (idx-4)*1024}")
            p(f"buffer_load_dwordx4 v{VP+idx-4}, s[8:11], s24 offen lds")
        else:
            p(f"s_add_u32 m0, s31, {slot*STG + 32768}")
            p(f"buffer_load_dwordx4 v{VS}, s[12:15], s25 offen lds")
    def adv():
        p("""s_add_u32 s23, s23, 1024
s_add_u32 s24, s24, s26
s_add_u32 s25, s25, s27""")
    DORD = [4, 5, 6, 7, 8, 0, 1, 2, 3]
    if PRO: stamp(p, 3)
    for idx in DORD: dma(0, idx)
    adv()
    if PRO: stamp(p, 4)
    srd(p, 72, "s66", "s67", hex(3584 * 2048))
    p(f"""s_and_b32 s69, s69, 0xffff
s_lshl_b32 s3, s2, 2
s_add_u32 s3, s3, s20
s_mul_i32 s3, s3, 1280
v_lshlrev_b32 v232, 7, v222
v_add_u32 v232, s3, v232
v_mov_b32 v233, 0x40000000
v_cmp_gt_u32 vcc, 10, v222
v_cndmask_b32 v232, v233, v232, vcc""")
    def touch():
        p(f"""s_cmp_eq_u32 s28, 2
s_cselect_b32 s72, s68, s72
s_cselect_b32 s73, s69, s73
s_cselect_b32 s74, {1024*2048}, s74
s_cselect_b32 s3, -5, 1
s_mul_i32 s3, s3, 1310720
v_add_u32 v232, s3, v232
buffer_load_dword v233, v232, s[72:75], 0 offen""")
    p(f"""s_lshl_b32 s47, s51, 13
v_add_u32 v{AX}, s47, v223
v_add_u32 v{AX+1}, {2*STG}, v{AX}
v_lshrrev_b32 v224, 4, v222
v_bfe_u32 v225, v222, 2, 2
v_and_b32 v226, 3, v222
v_lshl_add_u32 v227, v224, 3, v225
v_lshrrev_b32 v228, 1, v225
v_and_b32 v229, 1, v224
v_lshl_or_b32 v228, v229, 1, v228
v_lshlrev_b32 v230, 7, v227
v_lshl_add_u32 v230, v226, 3, v230
s_lshl_b32 s47, s50, 12
v_add_u32 v230, s47, v230""")
    for t in range(4):
        p(f"""v_xor_b32 v231, {t}, v228
v_lshl_add_u32 v{AP+t}, v231, 5, v230
v_add_u32 v{AP+4+t}, {2*STG}, v{AP+t}""")
    p(f"""v_xor_b32 v229, s50, v229
v_lshlrev_b32 v230, 6, v227
v_lshl_add_u32 v230, v226, 3, v230
v_lshl_add_u32 v230, v229, 5, v230
v_add_u32 v{AS}, 32768, v230
v_add_u32 v{AS+1}, {32768+2*STG}, v230""")
    zs = [f"v_mov_b32 v{r}, 0" for r in range(200)] + [f"v_accvgpr_write_b32 a{r}, 0" for r in range(120)]
    ZD = int(os.environ.get("ZD", "17"))
    dq = [(s, idx) for s in (1, 2) for idx in DORD]
    for k, z in enumerate(zs):
        if k % ZD == 0 and dq:
            s_, idx = dq.pop(0); dma(s_, idx)
            if idx == DORD[-1]: adv()
        p(z)
    for s_, idx in dq:
        dma(s_, idx)
        if idx == DORD[-1]: adv()
    p("buffer_load_dword v233, v232, s[72:75], 0 offen")
    def rdx(slot, buf, i):
        p(f"ds_read_b128 {xf(buf, i)}, v{AX+(slot>>1)} offset:{(slot&1)*STG + i*1024}")
    def rdw(slot, j):
        t, side = j >> 1, j & 1
        b = wf(j)
        if t < 4:
            off = (slot & 1) * STG + 16384 + side * 8192; a = AP + 4 * (slot >> 1) + t; d = 512
        else:
            off = (slot & 1) * STG + side * 2048; a = AS + (slot >> 1); d = 256
        p(f"ds_read_b64_tr_b16 a[{b}:{b+1}], v{a} offset:{off}")
        p(f"ds_read_b64_tr_b16 a[{b+2}:{b+3}], v{a} offset:{off+d}")
    stamp(p, 5 if PRO else 1)
    p("s_waitcnt vmcnt(19)")
    p("s_barrier")
    stamp(p, 6 if PRO else 2)
    for j in range(3): rdw(0, j)
    for i in range(8): rdx(0, 0, i)
    def stage(slot, do_dma, vm, last=False):
        buf = slot & 1
        nslot = (slot + 1) & 3
        if not last:
            p(f"s_waitcnt vmcnt({vm})")
            p("s_barrier")
        dq = list(DORD) if do_dma else []
        for j in range(10):
            for i in range(8):
                b = wf(j)
                p(f"v_mfma_f32_16x16x32_bf16 {acc(i,j)}, a[{b}:{b+3}], {xf(buf,i)}, {acc(i,j)}")
                if i == 0:
                    if j + 3 < 10: rdw(slot, j + 3)
                    elif not last: rdw(nslot, j + 3 - 10)
                if i == 4 and 1 <= j <= 8 and not last: rdx(nslot, buf ^ 1, j - 1)
                if i in (2, 6) and dq: dma((slot + 3) & 3, dq.pop(0))
        if do_dma: adv()
    p("s_mov_b32 s28, 7")
    p(f"{n}_loop:")
    for s in range(4): stage(s, True, 10 if s < 2 else 9)
    touch()
    p(f"""s_sub_u32 s28, s28, 1
s_cmp_lg_u32 s28, 0
s_cbranch_scc1 {n}_loop""")
    if not PRO: stamp(p, 3)
    stage(0, True, 10)
    stage(1, False, 10)
    stage(2, False, 0)
    stage(3, False, 0, last=True)
    if not PRO: stamp(p, 4)
    p(f"""v_lshrrev_b32 v224, 2, v223
v_mov_b32 v225, 0
s_lshl_b32 s3, s2, 10
s_lshl_b32 s47, s20, 8
s_add_u32 s3, s3, s47
s_add_u32 s3, s3, {FLAG_OFF}
buffer_store_dword v225, v224, s[16:19], s3 offen""")
    pair_info("s50", "0", "s60", "s61")
    pair_info("s50", "1", "s60", "s62")
    single_info("0", "s63", "s64")
    single_info("1", "s63", "s65")
    QS = (32 ** -0.5) * LOG2E
    p(f"""s_mov_b32 s70, {hx(-LOG2E)}
s_mov_b32 s71, {hx(-LOG2E)}
s_mov_b32 s72, 1.0
s_mov_b32 s73, 1.0
s_lshl_b32 s66, s22, 4
s_lshl_b32 s47, s51, 3
s_add_u32 s66, s66, s47
s_lshl_b32 s47, s50, 3
v_add_u32 v224, s47, v223
s_nop 7""")
    T0 = 226
    def getacc(i, j, tmp):
        if i < 5: return (i * 10 + j) * 4
        b = ((i - 5) * 10 + j) * 4
        for e in range(4): p(f"v_accvgpr_read_b32 v{tmp+e}, a{b+e}")
        return tmp
    def qkv_group(tiles, blkG, blkU, boff, vo):
        for side, blk in ((0, blkG), (1, blkU)):
            p(f"""s_add_u32 s47, {blk}, {boff}
s_cmp_lt_u32 s47, 32
s_cselect_b32 s76, {hx(QS)}, 1.0
s_mov_b32 s77, s76
s_lshl_b32 s74, s47, 17
s_lshl_b32 s47, s66, 10
s_add_u32 s74, s74, s47
s_add_u32 s74, s74, {QKV_OFF}""")
            for i in range(8):
                o = T0 + 8 + (i & 1) * 4
                for k, t in enumerate(tiles):
                    r = getacc(i, 2 * t + side, T0 + 4 * k)
                    p(f"v_pk_mul_f32 v[{r}:{r+1}], v[{r}:{r+1}], s[76:77]")
                    p(f"v_pk_mul_f32 v[{r+2}:{r+3}], v[{r+2}:{r+3}], s[76:77]")
                    p(f"v_cvt_pk_bf16_f32 v{o+2*k}, v{r}, v{r+1}")
                    p(f"v_cvt_pk_bf16_f32 v{o+2*k+1}, v{r+2}, v{r+3}")
                if len(tiles) == 2: p(f"buffer_store_dwordx4 v[{o}:{o+3}], v{vo}, s[16:19], s74 offen offset:{(i&3)*1024}{STM}")
                else: p(f"buffer_store_dwordx2 v[{o}:{o+1}], v{vo}, s[16:19], s74 offen offset:{(i&3)*1024}{STM}")
                if i == 3: p("s_add_u32 s74, s74, 4096")
    def gu_group(tiles, blk, boff, vo):
        p(f"""s_add_u32 s47, {blk}, {boff+32}
s_lshl_b32 s74, s47, 10
s_mul_i32 s47, s66, {ACT_T}
s_add_u32 s74, s74, s47
s_add_u32 s74, s74, {ACT_OFF}""")
        for i in range(8):
            o = T0 + 16 + (i & 1) * 4
            for k, t in enumerate(tiles):
                g = getacc(i, 2 * t, T0)
                u = getacc(i, 2 * t + 1, T0 + 4)
                e = T0 + 8 + 4 * (k & 1)
                p(f"v_pk_mul_f32 v[{e}:{e+1}], v[{g}:{g+1}], s[70:71]")
                p(f"v_pk_mul_f32 v[{e+2}:{e+3}], v[{g+2}:{g+3}], s[70:71]")
                for x in range(4): p(f"v_exp_f32 v{e+x}, v{e+x}")
                p(f"v_pk_mul_f32 v[{g}:{g+1}], v[{g}:{g+1}], v[{u}:{u+1}]")
                p(f"v_pk_mul_f32 v[{g+2}:{g+3}], v[{g+2}:{g+3}], v[{u+2}:{u+3}]")
                p(f"v_pk_add_f32 v[{e}:{e+1}], v[{e}:{e+1}], s[72:73]")
                p(f"v_pk_add_f32 v[{e+2}:{e+3}], v[{e+2}:{e+3}], s[72:73]")
                for x in range(4): p(f"v_rcp_f32 v{e+x}, v{e+x}")
                p(f"v_pk_mul_f32 v[{g}:{g+1}], v[{g}:{g+1}], v[{e}:{e+1}]")
                p(f"v_pk_mul_f32 v[{g+2}:{g+3}], v[{g+2}:{g+3}], v[{e+2}:{e+3}]")
                p(f"v_cvt_pk_bf16_f32 v{o+2*k}, v{g}, v{g+1}")
                p(f"v_cvt_pk_bf16_f32 v{o+2*k+1}, v{g+2}, v{g+3}")
            if len(tiles) == 2: p(f"buffer_store_dwordx4 v[{o}:{o+3}], v{vo}, s[16:19], s74 offen{STM}")
            else: p(f"buffer_store_dwordx2 v[{o}:{o+1}], v{vo}, s[16:19], s74 offen{STM}")
            if i < 7: p(f"s_add_u32 s74, s74, {ACT_T}")
    p(f"""s_cmp_lg_u32 s60, 0
s_cbranch_scc1 {n}_gu_ab""")
    qkv_group((0, 1), "s61", "s62", 0, 223)
    qkv_group((2, 3), "s61", "s62", 1, 223)
    p(f"s_branch {n}_c")
    p(f"{n}_gu_ab:")
    gu_group((0, 1), "s61", 0, 223)
    gu_group((2, 3), "s61", 1, 223)
    p(f"{n}_c:")
    p("s_nop 3")
    p(f"""s_cmp_lg_u32 s63, 0
s_cbranch_scc1 {n}_gu_c""")
    qkv_group((4,), "s64", "s65", 0, 224)
    p(f"s_branch {n}_fin")
    p(f"{n}_gu_c:")
    gu_group((4,), "s64", 0, 224)
    p(f"{n}_fin:")
    if not PRO: stamp(p, 5)
    if DBG: p("s_waitcnt vmcnt(0)")
    if not PRO: stamp(p, 6)
    stamp_out(p, 7, 0, "s20", 1)
    p(f"{n}_end:")
    p("s_endpgm")
    return p.finalize() + descriptor(n, 512, 256), f"; @launch kernel={n} grid=(256,1,1) block=(256,1,1) lds={4*STG}"

def build(parts, path):
    hdr = open(f"cdna_kernels/{NAME}.s.ref").read().split("; Override launch")[0]
    txt = hdr + "\n".join(l for _, l in parts) + "\n" + '.amdgcn_target "amdgcn-amd-amdhsa--gfx950"\n' + "".join(c for c, _ in parts)
    open(path, "w").write(txt)
    print("wrote", path, len(txt))

if __name__ == "__main__":
    parts = [gen_ln(), gen_g1()]
    try:
        import gen2
        parts += gen2.parts()
    except ImportError:
        pass
    build(parts, sys.argv[1] if len(sys.argv) > 1 else f"cdna_kernels/{NAME}.s")
```

```python
import sys, os
sys.path.insert(0, "dev")
from asmlib import Prog
from gen import *

ASTG = 16384
K2_LDS = 49152 + 1024
GPRIO = int(os.environ.get("GPRIO", "0"))
APRIO = os.environ.get("APRIO", "3:16,2:8,1:3")
GSCHED = os.environ.get("GSCHED", "")
XSC = os.environ.get("XSC", "")
TOUCH = os.environ.get("TOUCH", "")
GROLE = int(os.environ.get("GROLE", "1"))
OPRIO = int(os.environ.get("OPRIO", "0"))
HACK = os.environ.get("HACK", "")
FINE = int(os.environ.get("FINE", "0"))
AORD = int(os.environ.get("AORD", "1"))
GORD = int(os.environ.get("GORD", "2"))
def r(b, k=4): return f"v[{b}:{b+k-1}]"

def attn_part(p, n):
    S = [0, 16]; O = [32, 48]; P = [64, 72]; KF = [80, 88]; VF = [96, 104]; L = [112, 116]; Q = [120, 128]
    SEL = 136; VD = 140; AK, AV0, AV1 = 142, 143, 144; BK, BV0, BV1 = 145, 146, 147; NK = 148; NM = 150
    T = 152; LN_ = T + 1; KL = T + 10
    p(f"""s_and_b32 s21, s2, 7
s_lshl_b32 s21, s21, 1
s_bfe_u32 s3, s2, 0x10003
s_add_u32 s21, s21, s3
s_lshr_b32 s41, s2, {8 if GROLE == 2 else 9}
s_lshl_b32 s3, s41, 4
s_add_u32 s21, s21, s3
s_bfe_u32 s22, s2, 0x40004
s_and_b32 s23, s20, 1
s_lshr_b32 s24, s20, 1
s_mov_b32 s40, 0
v_lshlrev_b32 v{VD}, 4, v{LN_}
v_lshrrev_b32 v{T+2}, 4, v{LN_}
v_lshlrev_b32 v{T+3}, 2, v{T+2}
v_xor_b32 v{T+3}, v{T+3}, v{LN_}
v_lshlrev_b32 v{VD+1}, 4, v{T+3}
v_add_u32 v{VD+1}, {32*131072}, v{VD+1}
s_add_u32 s25, s21, 32
s_lshl_b32 s25, s25, 17
s_add_u32 s25, s25, {QKV_OFF}
s_lshl_b32 s26, s24, 16
s_add_u32 s25, s25, s26
s_lshl_b32 s26, s23, 11
s_add_u32 s25, s25, s26
s_lshl_b32 s27, s24, 13
s_add_u32 s27, s27, s26
s_waitcnt lgkmcnt(0)""")
    srd(p, 4, "s34", "s35", hex(WS_BYTES))
    def dma_stage(slot_sgpr):
        p(f"s_add_u32 s3, s27, {slot_sgpr}")
        for kv in range(2):
            p(f"s_add_u32 m0, s3, {kv*4096}")
            p(f"buffer_load_dwordx4 v{VD+kv}, s[4:7], s28 offen lds")
            p(f"buffer_load_dwordx4 v{VD+kv}, s[4:7], s28 offen offset:1024 lds")
        p("s_add_u32 s28, s28, 4096")
    def start_dma():
        p("s_mov_b32 s28, s25")
        dma_stage("0")
    start_dma()
    p(f"""v_bfe_u32 v{T+2}, v{LN_}, 4, 1
v_lshrrev_b32 v{T+3}, 5, v{LN_}
v_and_b32 v{T+4}, 15, v{LN_}
v_lshlrev_b32 v{KL}, 10, v{T+2}
v_lshl_add_u32 v{KL}, v{T+3}, 8, v{KL}
v_lshl_add_u32 v{KL}, v{T+4}, 4, v{KL}
s_lshl_b32 s26, s21, 17
s_add_u32 s26, s26, {QKV_OFF}
s_lshl_b32 s3, s22, 13
s_add_u32 s26, s26, s3
s_lshl_b32 s3, s23, 12
s_add_u32 s26, s26, s3""")
    for b in range(2):
        for x in range(2):
            p(f"buffer_load_dwordx4 {r(Q[b]+4*x)}, v{KL}, s[4:7], s26 offen offset:{b*2048+x*512}")
    dma_stage(str(ASTG))
    if not AORD: dma_stage(str(2*ASTG))
    p(f"""s_lshl_b32 s26, s24, 13
v_add_u32 v{BK}, s26, v{KL}
v_and_b32 v{T+5}, 3, v{LN_}
v_bfe_u32 v{T+6}, v{LN_}, 2, 2
v_xor_b32 v{T+7}, v{T+3}, v{T+5}
v_lshl_add_u32 v{T+7}, v{T+7}, 2, v{T+6}
v_lshlrev_b32 v{BV0}, 8, v{T+5}
v_lshl_add_u32 v{BV0}, v{T+7}, 4, v{BV0}
v_lshl_add_u32 v{BV0}, v{T+2}, 3, v{BV0}
s_add_u32 s26, s26, 4096
v_add_u32 v{BV0}, s26, v{BV0}
v_xor_b32 v{BV1}, 128, v{BV0}
v_bfe_u32 v{T+5}, v{LN_}, 2, 1
v_cmp_eq_u32 vcc, v{T+5}, v{T+2}
v_mov_b32 v{T+6}, 0x3f803f80
v_cndmask_b32 v{SEL}, 0, v{T+6}, vcc
v_mov_b32 v{SEL+1}, v{SEL}
v_mov_b32 v{SEL+2}, v{SEL}
v_mov_b32 v{SEL+3}, v{SEL}""")
    def rdk(buf, areg, kblk):
        p(f"ds_read_b128 {r(KF[buf])}, v{areg} offset:{kblk*2048}")
        p(f"ds_read_b128 {r(KF[buf]+4)}, v{areg} offset:{kblk*2048+512}")
    def rdv(buf, kblk):
        for x in range(2):
            p(f"ds_read_b64_tr_b16 {r(VF[buf]+4*x,2)}, v{AV0} offset:{kblk*2048+x*1024}")
            p(f"ds_read_b64_tr_b16 {r(VF[buf]+4*x+2,2)}, v{AV1} offset:{kblk*2048+x*1024}")
    def qk(b, buf, x):
        c = "0" if x == 0 else r(S[b], 16)
        p(f"v_mfma_f32_32x32x16_bf16 {r(S[b],16)}, {r(KF[buf]+4*x)}, {r(Q[b]+4*x)}, {c}")
    def pv(b, buf, x):
        p(f"v_mfma_f32_32x32x16_bf16 {r(O[b],16)}, {r(VF[buf]+4*x)}, {r(P[b]+4*x)}, {r(O[b],16)}")
    def sm(b, x):
        p(f"v_mfma_f32_16x16x32_bf16 {r(L[b])}, {r(SEL)}, {r(P[b]+4*x)}, {r(L[b])}")
    def ex(b, x, part, sub):
        base = S[b] + 8 * x + 4 * part
        if sub:
            for e in range(4): p(f"v_sub_f32 v{base+e}, v{base+e}, v{NM+b}")
        for e in range(4): p(f"v_exp_f32 v{base+e}, v{base+e}")
    def cv(b, x, part):
        base = S[b] + 8 * x + 4 * part
        for e in range(2): p(f"v_cvt_pk_bf16_f32 v{P[b]+4*x+2*part+e}, v{base+2*e}, v{base+2*e+1}")
    def mainloop(tag, sub):
        for b in range(2):
            for e in range(16): p(f"v_mov_b32 v{O[b]+e}, 0")
            for e in range(4): p(f"v_mov_b32 v{L[b]+e}, 0")
        for e in range(8): p(f"v_mov_b32 v{P[1]+e}, 0")
        for e in range(8): p(f"v_mov_b32 v{VF[1]+e}, 0")
        p(f"s_waitcnt vmcnt({4 if AORD else 8})")
        p("s_barrier")
        if not sub: stamp(p, 1)
        rdk(0, BK, 0)
        if AORD: dma_stage(str(2*ASTG))
        qk(0, 0, 0); qk(0, 0, 1)
        p(f"""s_mov_b32 s29, 0
s_mov_b32 s30, {ASTG}
s_mov_b32 s31, {2*ASTG}
s_mov_b32 s33, 16""")
        p(f"{n}_{tag}loop:")
        if APRIO and not sub:
            for k, it in enumerate(APRIO.split(",")):
                pr, rem = it.split(":")
                p1, p2 = (pr.split("/") * 2)[:2]
                p(f"""s_cmp_lg_u32 s33, {rem}
s_cbranch_scc1 {n}_ap{k}
s_setprio {p1}""")
                if p2 != p1: p(f"""s_cmp_eq_u32 s41, 0
s_cbranch_scc1 {n}_ap{k}
s_setprio {p2}""")
                p(f"{n}_ap{k}:")
        p(f"""v_add_u32 v{AK}, s29, v{BK}
v_add_u32 v{AV0}, s29, v{BV0}
v_add_u32 v{AV1}, s29, v{BV1}
v_add_u32 v{NK}, s30, v{BK}""")
        for kb in range(2):
            cur, nxt = kb & 1, (kb & 1) ^ 1
            rdv(cur, kb)
            for x in range(2):
                qk(1, cur, x)
                ex(0, x, 0, sub)
                pv(1, nxt, x)
                ex(0, x, 1, sub)
                cv(0, x, 0)
                sm(1, x)
                cv(0, x, 1)
                if x == 0:
                    if kb < 1: rdk(nxt, AK, kb + 1)
                    else:
                        p(f"""s_cmp_le_u32 s33, 3
s_cbranch_scc1 {n}_{tag}nodma
s_waitcnt vmcnt(4) lgkmcnt(0)
s_barrier""")
                        dma_stage("s29")
                        p(f"""s_branch {n}_{tag}join
{n}_{tag}nodma:
s_waitcnt vmcnt(0) lgkmcnt(0)
s_barrier
{n}_{tag}join:""")
                        rdk(nxt, NK, 0)
            for x in range(2):
                qk(0, nxt, x)
                ex(1, x, 0, sub)
                pv(0, cur, x)
                ex(1, x, 1, sub)
                cv(1, x, 0)
                sm(0, x)
                cv(1, x, 1)
        p(f"""s_mov_b32 s3, s29
s_mov_b32 s29, s30
s_mov_b32 s30, s31
s_mov_b32 s31, s3
s_sub_u32 s33, s33, 1
s_cmp_lg_u32 s33, 0
s_cbranch_scc1 {n}_{tag}loop""")
        for x in range(2):
            pv(1, 1, x)
            sm(1, x)
    mainloop("a", False)
    p(f"{n}_merge:")
    p("s_setprio 3")
    stamp(p, 2)
    F = T + 12
    p(f"""s_mul_i32 s26, s20, 4608
v_lshlrev_b32 v{T+2}, 4, v{LN_}
v_lshlrev_b32 v{T+3}, 2, v{LN_}
s_xor_b32 s3, s20, 2
s_mul_i32 s3, s3, 4608
v_add_u32 v{T+4}, s3, v{T+2}
v_add_u32 v{T+5}, s3, v{T+3}
v_add_u32 v{T+2}, s26, v{T+2}
v_add_u32 v{T+3}, s26, v{T+3}
s_waitcnt lgkmcnt(0)
s_barrier
s_cmp_lg_u32 s24, 0
s_cbranch_scc1 {n}_h1""")
    def fin(mine, other):
        p("s_nop 7")
        for e in range(4): p(f"ds_write_b128 v{T+2}, {r(O[other]+4*e)} offset:{e*1024}")
        p(f"ds_write_b32 v{T+3}, v{L[other]} offset:4096")
        p(f"""v_bfe_u32 v{F}, v{LN_}, 4, 1
v_mul_u32_u24 v{F}, {ACT_T}, v{F}
v_lshrrev_b32 v{F+1}, 5, v{LN_}
v_lshl_add_u32 v{F}, v{F+1}, 8, v{F}
v_and_b32 v{F+1}, 15, v{LN_}
v_lshl_add_u32 v{F}, v{F+1}, 4, v{F}
s_lshl_b32 s3, s22, 3
s_lshl_b32 s26, s23, 2
s_add_u32 s3, s3, s26
s_add_u32 s3, s3, {2*mine}
s_mul_i32 s3, s3, {ACT_T}
s_lshl_b32 s26, s21, 10
s_add_u32 s3, s3, s26
s_add_u32 s26, s3, {ACT_OFF}
s_waitcnt lgkmcnt(0)
s_barrier""")
        p(f"ds_read_b32 v{S[1]}, v{T+5} offset:4096")
        for e in range(4): p(f"ds_read_b128 {r(S[0]+4*e)}, v{T+4} offset:{e*1024}")
        p(f"""v_add_f32 v{S[1]}, v{S[1]}, v{L[mine]}
v_mov_b32 v{T+7}, {hx(2.0**60)}
v_cmp_nlt_f32 vcc, v{S[1]}, v{T+7}
s_mov_b64 s[36:37], vcc
v_mov_b32 v{T+7}, {hx(2.0**-60)}
v_cmp_ngt_f32 vcc, v{S[1]}, v{T+7}
s_or_b64 s[36:37], s[36:37], vcc
s_cmp_lg_u64 s[36:37], 0
s_cselect_b32 s38, 1, 0
v_mov_b32 v{T+6}, s38
s_lshl_b32 s3, s20, 2
s_add_u32 s3, s3, 49152
v_mov_b32 v{T+7}, s3
ds_write_b32 v{T+7}, v{T+6}
v_rcp_f32 v{S[1]}, v{S[1]}""")
        for e in range(16): p(f"v_add_f32 v{S[0]+e}, v{S[0]+e}, v{O[mine]+e}")
        p("s_waitcnt lgkmcnt(0)")
        p("s_barrier")
        p(f"v_mov_b32 v{T+7}, 49152")
        p(f"ds_read_b128 {r(KF[0])}, v{T+7}")
        for e in range(16): p(f"v_mul_f32 v{S[0]+e}, v{S[0]+e}, v{S[1]}")
        for u in range(2):
            for k2, b in enumerate((4 * u, 4 * u + 2, 8 + 4 * u, 8 + 4 * u + 2)):
                p(f"v_cvt_pk_bf16_f32 v{P[0]+4*u+k2}, v{S[0]+b}, v{S[0]+b+1}")
        p(f"""v_or3_b32 v{KF[0]}, v{KF[0]}, v{KF[0]+1}, v{KF[0]+2}
v_or_b32 v{KF[0]}, v{KF[0]}, v{KF[0]+3}
v_readfirstlane_b32 s38, v{KF[0]}
s_andn2_b32 s38, s38, s40
s_cmp_lg_u32 s38, 0
s_cbranch_scc1 {n}_fallback
buffer_store_dwordx4 {r(P[0])}, v{F}, s[4:7], s26 offen sc1
buffer_store_dwordx4 {r(P[0]+4)}, v{F}, s[4:7], s26 offen offset:512 sc1
s_lshl_b32 s3, s22, 1
s_add_u32 s3, s3, s41
s_lshl_b32 s3, s3, 2
s_lshl_b32 s26, s23, 1
s_add_u32 s3, s3, s26
s_add_u32 s3, s3, {mine}
s_lshl_b32 s3, s3, 7
s_add_u32 s3, s3, {FLAG_OFF}
v_mov_b32 v{F+1}, 1
v_mov_b32 v{F+2}, 0
s_mov_b64 exec, 1
s_waitcnt vmcnt(0)
buffer_atomic_add v{F+1}, v{F+2}, s[4:7], s3 offen sc1
s_mov_b64 exec, -1""")
        stamp(p, 3)
        stamp_out(p, 4, 0, "s20", 2)
        p("s_endpgm")
    fin(0, 1)
    p(f"{n}_h1:")
    fin(1, 0)
    p(f"{n}_fallback:")
    M = NM
    p(f"""s_mov_b32 s40, 1
v_mov_b32 v{M}, 0xff800000
v_mov_b32 v{M+1}, 0xff800000
s_add_u32 s28, s21, 32
s_lshl_b32 s28, s28, 17
s_add_u32 s28, s28, {QKV_OFF}
s_lshl_b32 s3, s24, 16
s_add_u32 s28, s28, s3
s_mov_b32 s33, 32""")
    p(f"{n}_fbloop:")
    p(f"buffer_load_dwordx4 {r(KF[0])}, v{KL}, s[4:7], s28 offen")
    p(f"buffer_load_dwordx4 {r(KF[0]+4)}, v{KL}, s[4:7], s28 offen offset:512")
    p("s_waitcnt vmcnt(0)")
    for b in range(2):
        qk(b, 0, 0); qk(b, 0, 1)
    for b in range(2):
        for e in range(0, 16, 2): p(f"v_max3_f32 v{M+b}, v{M+b}, v{S[b]+e}, v{S[b]+e+1}")
    p(f"""s_add_u32 s28, s28, 2048
s_sub_u32 s33, s33, 1
s_cmp_lg_u32 s33, 0
s_cbranch_scc1 {n}_fbloop""")
    for b in range(2):
        p(f"v_mov_b32 v{T+2}, v{M+b}")
        p(f"v_permlane32_swap_b32 v{M+b}, v{T+2}")
        p(f"v_max_f32 v{M+b}, v{M+b}, v{T+2}")
    p(f"""s_lshl_b32 s3, s20, 9
v_lshlrev_b32 v{T+2}, 3, v{LN_}
v_add_u32 v{T+3}, s3, v{T+2}
s_xor_b32 s3, s3, 1024
v_add_u32 v{T+2}, s3, v{T+2}
s_barrier
ds_write_b64 v{T+3}, v[{M}:{M+1}]
s_waitcnt lgkmcnt(0)
s_barrier
ds_read_b64 v[{T+4}:{T+5}], v{T+2}
v_max_f32 v{M}, v{M}, v{T+4}
v_max_f32 v{M+1}, v{M+1}, v{T+5}
s_barrier""")
    start_dma()
    dma_stage(str(ASTG))
    if not AORD: dma_stage(str(2*ASTG))
    mainloop("f", True)
    p(f"s_branch {n}_merge")

GMAP = int(os.environ.get("GMAP", "0"))
GMAPS = ["""s_and_b32 s24, s2, 1
s_bfe_u32 s21, s2, 0x20001
s_lshl_b32 s21, s21, 2
s_bfe_u32 s3, s2, 0x20003
s_add_u32 s21, s21, s3
s_bfe_u32 s22, s2, 0x30005
s_lshl_b32 s46, s22, 8
s_lshl_b32 s3, s24, 7
s_add_u32 s46, s46, s3""",
"""s_and_b32 s21, s2, 7
s_lshl_b32 s21, s21, 1
s_bfe_u32 s3, s2, 0x10003
s_add_u32 s21, s21, s3
s_bfe_u32 s46, s2, 0x40004
s_lshl_b32 s46, s46, 7""",
"""s_and_b32 s24, s2, 1
s_bfe_u32 s21, s2, 0x20001
s_lshl_b32 s21, s21, 2
s_bfe_u32 s3, s2, 0x20003
s_add_u32 s21, s21, s3
s_bfe_u32 s22, s2, 0x30005
s_lshl_b32 s46, s22, 7
s_lshl_b32 s3, s24, 10
s_add_u32 s46, s46, s3""",
"""s_and_b32 s24, s2, 3
s_bfe_u32 s21, s2, 0x10002
s_lshl_b32 s21, s21, 3
s_bfe_u32 s3, s2, 0x30003
s_add_u32 s21, s21, s3
s_bfe_u32 s22, s2, 0x20006
s_lshl_b32 s46, s22, 7
s_lshl_b32 s3, s24, 9
s_add_u32 s46, s46, s3"""]
def gemm_part(p, n):
    def acc(i, t): return (i * 4 + t) * 4
    XF = 32
    WF = 128
    AR = 144; VA = 148; VW = 150
    T = 152; LN_ = T + 1
    PL = T + 8; VZ = T + 9; VO = T + 10
    NS = 72
    P1 = int(os.environ.get("P1", "51")); P2 = int(os.environ.get("P2", "59"))
    p(f"""s_load_dwordx2 s[38:39], s[0:1], 16
s_load_dwordx2 s[40:41], s[0:1], 0
s_load_dwordx2 s[42:43], s[0:1], 56
{GMAPS[GMAP]}
v_lshrrev_b32 v{T+2}, 4, v{LN_}
v_lshrrev_b32 v{T+3}, 3, v{LN_}
v_bfe_u32 v{T+4}, v{LN_}, 1, 2
v_xor_b32 v{T+4}, v{T+4}, v{T+2}
v_and_b32 v{T+6}, 1, v{LN_}
v_lshl_or_b32 v{T+4}, v{T+4}, 1, v{T+6}
v_lshlrev_b32 v{VW}, 11, v{T+3}
v_lshl_add_u32 v{VW}, v{T+4}, 4, v{VW}
s_lshl_b32 s3, s20, 15
s_add_u32 s3, s3, s46
v_add_u32 v{VW}, s3, v{VW}
v_add_u32 v{VW+1}, 16384, v{VW}
s_mov_b32 s25, 0
s_lshl_b32 s29, s20, 11
s_lshl_b32 s3, s21, 3
s_lshl_b32 s26, s20, 1
s_add_u32 s23, s3, s26
s_mul_i32 s3, s23, {ACT_T}
s_add_u32 s3, s3, {ACT_OFF}
v_lshlrev_b32 v{T+5}, 4, v{LN_}
v_add_u32 v{VA}, s3, v{T+5}
v_add_u32 v{VA+1}, {ACT_T}, v{VA}
s_mov_b32 s26, {32*1024}
v_and_b32 v{VO}, 15, v{LN_}
v_lshlrev_b32 v{VO}, 11, v{VO}
v_lshl_add_u32 v{VO}, v{T+2}, 3, v{VO}
s_lshl_b32 s3, s23, 15
s_add_u32 s3, s3, s46
v_add_u32 v{VO}, s3, v{VO}
v_add_u32 v{VO+1}, 32768, v{VO}
s_waitcnt lgkmcnt(0)""")
    srd(p, 4, "s34", "s35", hex(WS_BYTES))
    srd(p, 8, "s36", "s37", hex(3584 * 2048))
    srd(p, 12, "s40", "s41", hex(4 << 20))
    def ldw(slot, j):
        p(f"s_add_u32 m0, s29, {slot*8192 + j*1024}")
        return f"buffer_load_dwordx4 v{VW+j}, s[8:11], s25 offen lds"
    def ldx(slot, k):
        return f"buffer_load_dwordx4 {r(XF + slot * 16 + k * 4)}, v{VA+(k>>1)}, s[4:7], s26 offen offset:{(k&1)*1024}"
    def advw(): p("s_add_u32 s25, s25, 131072")
    def advx(): p("s_add_u32 s26, s26, 2048")
    XR = XF + 5 * 16
    def issue(s):
        for j in range(2): p(ldw(s, j))
        for k in range(4): p(ldx(s, k))
        advw(); advx()
    for s in range(GORD):
        issue(s)
        if s == 0:
            for i in range(2):
                for t in range(4):
                    p(f"buffer_load_dwordx2 {r(XR+i*8+t*2,2)}, v{VO+i}, s[12:15], 0 offen offset:{t*32}")
    srd(p, 16, "s42", "s43", hex(4 << 20))
    p(f"""s_lshl_b32 s44, s21, 3
s_add_u32 s44, s44, s20
s_lshl_b32 s44, s44, 7
s_add_u32 s44, s44, {FLAG_OFF}
s_add_u32 s52, s44, 512
v_mov_b32 v{VZ}, 0
v_bfe_u32 v{T+3}, v{LN_}, 2, 2
v_lshl_add_u32 v{T+3}, v{T+2}, 2, v{T+3}
v_bfe_u32 v{T+4}, v{T+3}, 1, 2
v_and_b32 v{T+6}, 3, v{LN_}
v_lshlrev_b32 v{T+3}, 7, v{T+3}
v_lshl_add_u32 v{T+3}, v{T+6}, 3, v{T+3}""")
    for t in range(4):
        p(f"v_xor_b32 v{T+6}, {t}, v{T+4}")
        p(f"v_lshl_add_u32 v{AR+t}, v{T+6}, 5, v{T+3}")
    def rdw(slot, t):
        b = WF + (t & 3) * 4; off = slot * 8192 + (t >> 2) * 4096
        p(f"ds_read_b64_tr_b16 {r(b,2)}, v{AR+(t&3)} offset:{off}")
        p(f"ds_read_b64_tr_b16 {r(b+2,2)}, v{AR+(t&3)} offset:{off+2048}")
    p(f"s_waitcnt vmcnt({6*(GORD-1)})")
    p("s_barrier")
    for t in range(3): rdw(0, t)
    for s in range(GORD, 5): issue(s)
    for i in range(2):
        for t in range(4):
            a = acc(i, t); xr = XR + i * 8 + t * 2
            p(f"""v_lshlrev_b32 v{a}, 16, v{xr}
v_and_b32 v{a+1}, 0xffff0000, v{xr}
v_lshlrev_b32 v{a+2}, 16, v{xr+1}
v_and_b32 v{a+3}, 0xffff0000, v{xr+1}""")
    stamp(p, 1)
    def spin(tag, addr, val):
        p(f"""v_readfirstlane_b32 s3, v{PL}
s_cmp_ge_u32 s3, {val}
s_cbranch_scc1 {n}_{tag}_ok
{n}_{tag}_spin:
s_sleep 1
buffer_load_dword v{PL}, v{VZ}, s[4:7], {addr} offen sc1
s_waitcnt vmcnt(0)
v_readfirstlane_b32 s3, v{PL}
s_cmp_lt_u32 s3, {val}
s_cbranch_scc1 {n}_{tag}_spin
{n}_{tag}_ok:""")
    def step(s, q, vm):
        last = s == NS - 1
        p(f"s_waitcnt vmcnt({vm})")
        if not last: p("s_barrier")
        q = list(q)
        for t in range(8):
            b = WF + (t & 3) * 4
            for i in range(2):
                pend = None
                if q and (i == 0 or len(q) > 8 - t):
                    kind, sl, idx = q.pop(0)
                    pend = ldw(sl, idx) if kind == "w" else (ldx(sl, idx) if kind == "x" else idx)
                    if kind == "x" and idx == 3: pend += "\ns_add_u32 s26, s26, 2048"
                    if kind == "w" and idx == 1: pend += "\ns_add_u32 s25, s25, 131072"
                a = acc(i, t & 3); xb = XF + (s % 6) * 16 + i * 8 + (t >> 2) * 4
                p(f"v_mfma_f32_16x16x32_bf16 {r(a)}, {r(b)}, {r(xb)}, {r(a)}")
                if pend: p(pend)
                if i == 1:
                    if t + 3 < 8: rdw(s % 6, t + 3)
                    elif not last: rdw((s + 1) % 6, t + 3 - 8)
        assert not q
    def QW(L): return [("w", L % 6, j) for j in range(2)]
    def QX(L): return [("x", L % 6, k) for k in range(4)]
    p("s_mov_b32 s30, 8")
    p(f"s_setprio {GPRIO}")
    p(f"{n}_gloop:")
    if GSCHED:
        for k, it in enumerate(GSCHED.split(",")):
            pr, rem = it.split(":")
            p(f"""s_cmp_lg_u32 s30, {rem}
s_cbranch_scc1 {n}_gp{k}
s_setprio {pr}
{n}_gp{k}:""")
    if FINE:
        for k, rem in ((2, 8), (3, 6), (4, 4), (5, 2)):
            p(f"s_cmp_lg_u32 s30, {rem}\ns_cbranch_scc1 {n}_fs{k}")
            stamp(p, k)
            p(f"{n}_fs{k}:")
    for s in range(6): step(s, QW(s + 5) + QX(s + 5), 22)
    p(f"""s_sub_u32 s30, s30, 1
s_cmp_lg_u32 s30, 0
s_cbranch_scc1 {n}_gloop""")
    hist = []
    for L in range(48, 53): hist += [("w", L)] * 2 + [("x", L)] * 4
    def vmfor(tags):
        last = max(i for i, h in enumerate(hist) if h in tags)
        return len(hist) - 1 - last
    nx = 53
    for s in range(48, NS):
        L = s + 5
        if L == 56:
            p(f"""s_mov_b32 s8, s38
s_and_b32 s9, s39, 0xffff
s_mov_b32 s10, {1024*2048}
s_mov_b32 s25, 0""")
        for k, (ps, addr) in enumerate(((P1, "s44"), (P2, "s52"))):
            if s == ps:
                if not FINE: stamp(p, 2 + 2 * k)
                elif k == 0: stamp(p, 6)
                p(f"s_waitcnt vmcnt({vmfor([('poll', k)])})")
                spin("o%d" % k, addr, 16)
                if k == 0: p("s_mov_b32 s26, 0")
                if k == 1: p("s_setprio 3")
                if not FINE: stamp(p, 3 + 2 * k)
        lim = min(L, NS - 1, 55 if s < P1 else (63 if s < P2 else NS))
        pre = []
        while nx <= lim - 1 and nx <= lim:
            pre.append(nx); nx += 1
        for x in pre:
            for k in range(4): p(ldx(x % 6, k))
            advx(); hist.extend([("x", x)] * 4)
        need = [("x", s)] + ([("w", s + 1)] if s + 1 < NS else [])
        vm = vmfor(need)
        q = []
        if L < NS: q += QW(L); hist += [("w", L)] * 2
        if nx <= lim: q += QX(nx); hist += [("x", nx)] * 4; nx += 1
        for k, (ps, addr) in enumerate(((P1, "s44"), (P2, "s52"))):
            if s == ps - 2:
                q.append(("i", 0, f"buffer_load_dword v{PL}, v{VZ}, s[4:7], {addr} offen sc1")); hist.append(("poll", k))
        step(s, q, vm)
    for i in range(2):
        for t in range(4):
            a = acc(i, t); xr = XF + i * 8 + t * 2
            p(f"""v_cvt_pk_bf16_f32 v{xr}, v{a}, v{a+1}
v_cvt_pk_bf16_f32 v{xr+1}, v{a+2}, v{a+3}
buffer_store_dwordx2 {r(xr,2)}, v{VO+i}, s[16:19], 0 offen offset:{t*32}{STO}""")
    if not FINE: stamp(p, 6)
    stamp_out(p, 7, 0, "s20", 2)
    p("s_endpgm")

def gen_k2():
    p = Prog(); n = "k2_kernel"; header(p, n)
    p(f"""s_setprio 3
s_load_dwordx2 s[34:35], s[0:1], 72
s_load_dwordx2 s[36:37], s[0:1], 48
s_cmp_ge_u32 s2, 768
s_cbranch_scc1 {n}_end""")
    stamp(p, 0)
    p(f"""v_lshrrev_b32 v152, 6, v0
v_and_b32 v153, 63, v0
v_readfirstlane_b32 s20, v152
s_lshr_b32 s3, s2, 8
s_cmp_eq_u32 s3, {GROLE}
s_cbranch_scc1 {n}_gemm""")
    if os.environ.get("ONLY") == "g": p("s_endpgm")
    attn_part(p, n)
    p(f"{n}_gemm:")
    if os.environ.get("ONLY") == "a": p("s_endpgm")
    gemm_part(p, n)
    p(f"{n}_end:")
    p("s_endpgm")
    return p.finalize() + descriptor(n, 168, 168), f"; @launch kernel={n} grid=(768,1,1) block=(256,1,1) lds={K2_LDS}"

def parts():
    r_ = [gen_k2()]
    return r_
```

```python
import sys, os
sys.path.insert(0, "dev")
from asmlib import Prog
from gen import *

ASTG = 16384
K2_LDS = 49152 + 1024
GPRIO = int(os.environ.get("GPRIO", "0"))
APRIO = os.environ.get("APRIO", "3/1:16")
GSCHED = os.environ.get("GSCHED", "2:2")
XSC = os.environ.get("XSC", "")
TOUCH = os.environ.get("TOUCH", "")
GROLE = int(os.environ.get("GROLE", "2"))
FS = [int(x) for x in os.environ.get("FS", "64,69").split(",")]
RES = int(os.environ.get("RES", "0"))
TCH = int(os.environ.get("TCH", "0"))
OPRIO = int(os.environ.get("OPRIO", "0"))
HACK = os.environ.get("HACK", "")
FINE = int(os.environ.get("FINE", "0"))
AORD = int(os.environ.get("AORD", "1"))
GORD = int(os.environ.get("GORD", "2"))
def r(b, k=4): return f"v[{b}:{b+k-1}]"

def attn_part(p, n):
    S = [0, 16]; O = [32, 48]; P = [64, 72]; KF = [80, 88]; VF = [96, 104]; L = [112, 116]; Q = [120, 128]
    SEL = 136; VD = 140; AK, AV0, AV1 = 142, 143, 144; BK, BV0, BV1 = 145, 146, 147; NK = 148; NM = 150
    T = 152; LN_ = T + 1; KL = T + 10
    p(f"""s_and_b32 s21, s2, 7
s_lshl_b32 s21, s21, 1
s_bfe_u32 s3, s2, 0x10003
s_add_u32 s21, s21, s3
s_lshr_b32 s41, s2, {8 if GROLE == 2 else 9}
s_lshl_b32 s3, s41, 4
s_add_u32 s21, s21, s3
s_bfe_u32 s22, s2, 0x40004
s_and_b32 s23, s20, 1
s_lshr_b32 s24, s20, 1
s_mov_b32 s40, 0
v_lshlrev_b32 v{VD}, 4, v{LN_}
v_lshrrev_b32 v{T+2}, 4, v{LN_}
v_lshlrev_b32 v{T+3}, 2, v{T+2}
v_xor_b32 v{T+3}, v{T+3}, v{LN_}
v_lshlrev_b32 v{VD+1}, 4, v{T+3}
v_add_u32 v{VD+1}, {32*131072}, v{VD+1}
s_add_u32 s25, s21, 32
s_lshl_b32 s25, s25, 17
s_add_u32 s25, s25, {QKV_OFF}
s_lshl_b32 s26, s24, 16
s_add_u32 s25, s25, s26
s_lshl_b32 s26, s23, 11
s_add_u32 s25, s25, s26
s_lshl_b32 s27, s24, 13
s_add_u32 s27, s27, s26
s_waitcnt lgkmcnt(0)""")
    srd(p, 4, "s34", "s35", hex(WS_BYTES))
    def dma_stage(slot_sgpr):
        p(f"s_add_u32 s3, s27, {slot_sgpr}")
        for kv in range(2):
            p(f"s_add_u32 m0, s3, {kv*4096}")
            p(f"buffer_load_dwordx4 v{VD+kv}, s[4:7], s28 offen lds")
            p(f"buffer_load_dwordx4 v{VD+kv}, s[4:7], s28 offen offset:1024 lds")
        p("s_add_u32 s28, s28, 4096")
    def start_dma():
        p("s_mov_b32 s28, s25")
        dma_stage("0")
    start_dma()
    p(f"""v_bfe_u32 v{T+2}, v{LN_}, 4, 1
v_lshrrev_b32 v{T+3}, 5, v{LN_}
v_and_b32 v{T+4}, 15, v{LN_}
v_lshlrev_b32 v{KL}, 10, v{T+2}
v_lshl_add_u32 v{KL}, v{T+3}, 8, v{KL}
v_lshl_add_u32 v{KL}, v{T+4}, 4, v{KL}
s_lshl_b32 s26, s21, 17
s_add_u32 s26, s26, {QKV_OFF}
s_lshl_b32 s3, s22, 13
s_add_u32 s26, s26, s3
s_lshl_b32 s3, s23, 12
s_add_u32 s26, s26, s3""")
    for b in range(2):
        for x in range(2):
            p(f"buffer_load_dwordx4 {r(Q[b]+4*x)}, v{KL}, s[4:7], s26 offen offset:{b*2048+x*512}")
    dma_stage(str(ASTG))
    if not AORD: dma_stage(str(2*ASTG))
    p(f"""s_lshl_b32 s26, s24, 13
v_add_u32 v{BK}, s26, v{KL}
v_and_b32 v{T+5}, 3, v{LN_}
v_bfe_u32 v{T+6}, v{LN_}, 2, 2
v_xor_b32 v{T+7}, v{T+3}, v{T+5}
v_lshl_add_u32 v{T+7}, v{T+7}, 2, v{T+6}
v_lshlrev_b32 v{BV0}, 8, v{T+5}
v_lshl_add_u32 v{BV0}, v{T+7}, 4, v{BV0}
v_lshl_add_u32 v{BV0}, v{T+2}, 3, v{BV0}
s_add_u32 s26, s26, 4096
v_add_u32 v{BV0}, s26, v{BV0}
v_xor_b32 v{BV1}, 128, v{BV0}
v_bfe_u32 v{T+5}, v{LN_}, 2, 1
v_cmp_eq_u32 vcc, v{T+5}, v{T+2}
v_mov_b32 v{T+6}, 0x3f803f80
v_cndmask_b32 v{SEL}, 0, v{T+6}, vcc
v_mov_b32 v{SEL+1}, v{SEL}
v_mov_b32 v{SEL+2}, v{SEL}
v_mov_b32 v{SEL+3}, v{SEL}""")
    def rdk(buf, areg, kblk):
        p(f"ds_read_b128 {r(KF[buf])}, v{areg} offset:{kblk*2048}")
        p(f"ds_read_b128 {r(KF[buf]+4)}, v{areg} offset:{kblk*2048+512}")
    def rdv(buf, kblk):
        for x in range(2):
            p(f"ds_read_b64_tr_b16 {r(VF[buf]+4*x,2)}, v{AV0} offset:{kblk*2048+x*1024}")
            p(f"ds_read_b64_tr_b16 {r(VF[buf]+4*x+2,2)}, v{AV1} offset:{kblk*2048+x*1024}")
    def qk(b, buf, x):
        c = "0" if x == 0 else r(S[b], 16)
        p(f"v_mfma_f32_32x32x16_bf16 {r(S[b],16)}, {r(KF[buf]+4*x)}, {r(Q[b]+4*x)}, {c}")
    def pv(b, buf, x):
        p(f"v_mfma_f32_32x32x16_bf16 {r(O[b],16)}, {r(VF[buf]+4*x)}, {r(P[b]+4*x)}, {r(O[b],16)}")
    def sm(b, x):
        p(f"v_mfma_f32_16x16x32_bf16 {r(L[b])}, {r(SEL)}, {r(P[b]+4*x)}, {r(L[b])}")
    def ex(b, x, part, sub):
        base = S[b] + 8 * x + 4 * part
        if sub:
            for e in range(4): p(f"v_sub_f32 v{base+e}, v{base+e}, v{NM+b}")
        for e in range(4): p(f"v_exp_f32 v{base+e}, v{base+e}")
    def cv(b, x, part):
        base = S[b] + 8 * x + 4 * part
        for e in range(2): p(f"v_cvt_pk_bf16_f32 v{P[b]+4*x+2*part+e}, v{base+2*e}, v{base+2*e+1}")
    def mainloop(tag, sub):
        for b in range(2):
            for e in range(16): p(f"v_mov_b32 v{O[b]+e}, 0")
            for e in range(4): p(f"v_mov_b32 v{L[b]+e}, 0")
        for e in range(8): p(f"v_mov_b32 v{P[1]+e}, 0")
        for e in range(8): p(f"v_mov_b32 v{VF[1]+e}, 0")
        p(f"s_waitcnt vmcnt({4 if AORD else 8})")
        p("s_barrier")
        if not sub: stamp(p, 1)
        rdk(0, BK, 0)
        if AORD: dma_stage(str(2*ASTG))
        qk(0, 0, 0); qk(0, 0, 1)
        p(f"""s_mov_b32 s29, 0
s_mov_b32 s30, {ASTG}
s_mov_b32 s31, {2*ASTG}
s_mov_b32 s33, 16""")
        p(f"{n}_{tag}loop:")
        if APRIO and not sub:
            for k, it in enumerate(APRIO.split(",")):
                pr, rem = it.split(":")
                p1, p2 = (pr.split("/") * 2)[:2]
                p(f"""s_cmp_lg_u32 s33, {rem}
s_cbranch_scc1 {n}_ap{k}
s_setprio {p1}""")
                if p2 != p1: p(f"""s_cmp_eq_u32 s41, 0
s_cbranch_scc1 {n}_ap{k}
s_setprio {p2}""")
                p(f"{n}_ap{k}:")
        p(f"""v_add_u32 v{AK}, s29, v{BK}
v_add_u32 v{AV0}, s29, v{BV0}
v_add_u32 v{AV1}, s29, v{BV1}
v_add_u32 v{NK}, s30, v{BK}""")
        for kb in range(2):
            cur, nxt = kb & 1, (kb & 1) ^ 1
            rdv(cur, kb)
            for x in range(2):
                qk(1, cur, x)
                ex(0, x, 0, sub)
                pv(1, nxt, x)
                ex(0, x, 1, sub)
                cv(0, x, 0)
                sm(1, x)
                cv(0, x, 1)
                if x == 0:
                    if kb < 1: rdk(nxt, AK, kb + 1)
                    else:
                        p(f"""s_cmp_le_u32 s33, 3
s_cbranch_scc1 {n}_{tag}nodma
s_waitcnt vmcnt(4) lgkmcnt(0)
s_barrier""")
                        dma_stage("s29")
                        p(f"""s_branch {n}_{tag}join
{n}_{tag}nodma:
s_waitcnt vmcnt(0) lgkmcnt(0)
s_barrier
{n}_{tag}join:""")
                        rdk(nxt, NK, 0)
            for x in range(2):
                qk(0, nxt, x)
                ex(1, x, 0, sub)
                pv(0, cur, x)
                ex(1, x, 1, sub)
                cv(1, x, 0)
                sm(0, x)
                cv(1, x, 1)
        p(f"""s_mov_b32 s3, s29
s_mov_b32 s29, s30
s_mov_b32 s30, s31
s_mov_b32 s31, s3
s_sub_u32 s33, s33, 1
s_cmp_lg_u32 s33, 0
s_cbranch_scc1 {n}_{tag}loop""")
        for x in range(2):
            pv(1, 1, x)
            sm(1, x)
    mainloop("a", False)
    p(f"{n}_merge:")
    p("s_setprio 3")
    stamp(p, 2)
    F = T + 12
    p(f"""s_mul_i32 s26, s20, 4608
v_lshlrev_b32 v{T+2}, 4, v{LN_}
v_lshlrev_b32 v{T+3}, 2, v{LN_}
s_xor_b32 s3, s20, 2
s_mul_i32 s3, s3, 4608
v_add_u32 v{T+4}, s3, v{T+2}
v_add_u32 v{T+5}, s3, v{T+3}
v_add_u32 v{T+2}, s26, v{T+2}
v_add_u32 v{T+3}, s26, v{T+3}
s_waitcnt lgkmcnt(0)
s_barrier
s_cmp_lg_u32 s24, 0
s_cbranch_scc1 {n}_h1""")
    def fin(mine, other):
        p("s_nop 7")
        for e in range(4): p(f"ds_write_b128 v{T+2}, {r(O[other]+4*e)} offset:{e*1024}")
        p(f"ds_write_b32 v{T+3}, v{L[other]} offset:4096")
        p(f"""v_bfe_u32 v{F}, v{LN_}, 4, 1
v_mul_u32_u24 v{F}, {ACT_T}, v{F}
v_lshrrev_b32 v{F+1}, 5, v{LN_}
v_lshl_add_u32 v{F}, v{F+1}, 8, v{F}
v_and_b32 v{F+1}, 15, v{LN_}
v_lshl_add_u32 v{F}, v{F+1}, 4, v{F}
s_lshl_b32 s3, s22, 3
s_lshl_b32 s26, s23, 2
s_add_u32 s3, s3, s26
s_add_u32 s3, s3, {2*mine}
s_mul_i32 s3, s3, {ACT_T}
s_lshl_b32 s26, s21, 10
s_add_u32 s3, s3, s26
s_add_u32 s26, s3, {ACT_OFF}
s_waitcnt lgkmcnt(0)
s_barrier""")
        p(f"ds_read_b32 v{S[1]}, v{T+5} offset:4096")
        for e in range(4): p(f"ds_read_b128 {r(S[0]+4*e)}, v{T+4} offset:{e*1024}")
        p(f"""v_add_f32 v{S[1]}, v{S[1]}, v{L[mine]}
v_mov_b32 v{T+7}, {hx(2.0**60)}
v_cmp_nlt_f32 vcc, v{S[1]}, v{T+7}
s_mov_b64 s[36:37], vcc
v_mov_b32 v{T+7}, {hx(2.0**-60)}
v_cmp_ngt_f32 vcc, v{S[1]}, v{T+7}
s_or_b64 s[36:37], s[36:37], vcc
s_cmp_lg_u64 s[36:37], 0
s_cselect_b32 s38, 1, 0
v_mov_b32 v{T+6}, s38
s_lshl_b32 s3, s20, 2
s_add_u32 s3, s3, 49152
v_mov_b32 v{T+7}, s3
ds_write_b32 v{T+7}, v{T+6}
v_rcp_f32 v{S[1]}, v{S[1]}""")
        for e in range(16): p(f"v_add_f32 v{S[0]+e}, v{S[0]+e}, v{O[mine]+e}")
        p("s_waitcnt lgkmcnt(0)")
        p("s_barrier")
        p(f"v_mov_b32 v{T+7}, 49152")
        p(f"ds_read_b128 {r(KF[0])}, v{T+7}")
        for e in range(16): p(f"v_mul_f32 v{S[0]+e}, v{S[0]+e}, v{S[1]}")
        for u in range(2):
            for k2, b in enumerate((4 * u, 4 * u + 2, 8 + 4 * u, 8 + 4 * u + 2)):
                p(f"v_cvt_pk_bf16_f32 v{P[0]+4*u+k2}, v{S[0]+b}, v{S[0]+b+1}")
        p(f"""v_or3_b32 v{KF[0]}, v{KF[0]}, v{KF[0]+1}, v{KF[0]+2}
v_or_b32 v{KF[0]}, v{KF[0]}, v{KF[0]+3}
v_readfirstlane_b32 s38, v{KF[0]}
s_andn2_b32 s38, s38, s40
s_cmp_lg_u32 s38, 0
s_cbranch_scc1 {n}_fallback
buffer_store_dwordx4 {r(P[0])}, v{F}, s[4:7], s26 offen sc1
buffer_store_dwordx4 {r(P[0]+4)}, v{F}, s[4:7], s26 offen offset:512 sc1
s_lshl_b32 s3, s22, 1
s_add_u32 s3, s3, s41
s_lshl_b32 s3, s3, 2
s_lshl_b32 s26, s23, 1
s_add_u32 s3, s3, s26
s_add_u32 s3, s3, {mine}
s_lshl_b32 s3, s3, 7
s_add_u32 s3, s3, {FLAG_OFF}
v_mov_b32 v{F+1}, 1
v_mov_b32 v{F+2}, 0
s_mov_b64 exec, 1
s_waitcnt vmcnt(0)
buffer_atomic_add v{F+1}, v{F+2}, s[4:7], s3 offen sc1
s_mov_b64 exec, -1""")
        stamp(p, 3)
        stamp_out(p, 4, 0, "s20", 2)
        p("s_endpgm")
    fin(0, 1)
    p(f"{n}_h1:")
    fin(1, 0)
    p(f"{n}_fallback:")
    M = NM
    p(f"""s_mov_b32 s40, 1
v_mov_b32 v{M}, 0xff800000
v_mov_b32 v{M+1}, 0xff800000
s_add_u32 s28, s21, 32
s_lshl_b32 s28, s28, 17
s_add_u32 s28, s28, {QKV_OFF}
s_lshl_b32 s3, s24, 16
s_add_u32 s28, s28, s3
s_mov_b32 s33, 32""")
    p(f"{n}_fbloop:")
    p(f"buffer_load_dwordx4 {r(KF[0])}, v{KL}, s[4:7], s28 offen")
    p(f"buffer_load_dwordx4 {r(KF[0]+4)}, v{KL}, s[4:7], s28 offen offset:512")
    p("s_waitcnt vmcnt(0)")
    for b in range(2):
        qk(b, 0, 0); qk(b, 0, 1)
    for b in range(2):
        for e in range(0, 16, 2): p(f"v_max3_f32 v{M+b}, v{M+b}, v{S[b]+e}, v{S[b]+e+1}")
    p(f"""s_add_u32 s28, s28, 2048
s_sub_u32 s33, s33, 1
s_cmp_lg_u32 s33, 0
s_cbranch_scc1 {n}_fbloop""")
    for b in range(2):
        p(f"v_mov_b32 v{T+2}, v{M+b}")
        p(f"v_permlane32_swap_b32 v{M+b}, v{T+2}")
        p(f"v_max_f32 v{M+b}, v{M+b}, v{T+2}")
    p(f"""s_lshl_b32 s3, s20, 9
v_lshlrev_b32 v{T+2}, 3, v{LN_}
v_add_u32 v{T+3}, s3, v{T+2}
s_xor_b32 s3, s3, 1024
v_add_u32 v{T+2}, s3, v{T+2}
s_barrier
ds_write_b64 v{T+3}, v[{M}:{M+1}]
s_waitcnt lgkmcnt(0)
s_barrier
ds_read_b64 v[{T+4}:{T+5}], v{T+2}
v_max_f32 v{M}, v{M}, v{T+4}
v_max_f32 v{M+1}, v{M+1}, v{T+5}
s_barrier""")
    start_dma()
    dma_stage(str(ASTG))
    if not AORD: dma_stage(str(2*ASTG))
    mainloop("f", True)
    p(f"s_branch {n}_merge")

GMAP = int(os.environ.get("GMAP", "0"))
GMAPS = ["""s_and_b32 s24, s2, 1
s_bfe_u32 s21, s2, 0x20001
s_lshl_b32 s21, s21, 2
s_bfe_u32 s3, s2, 0x20003
s_add_u32 s21, s21, s3
s_bfe_u32 s22, s2, 0x30005
s_lshl_b32 s46, s22, 8
s_lshl_b32 s3, s24, 7
s_add_u32 s46, s46, s3""",
"""s_and_b32 s21, s2, 7
s_lshl_b32 s21, s21, 1
s_bfe_u32 s3, s2, 0x10003
s_add_u32 s21, s21, s3
s_bfe_u32 s46, s2, 0x40004
s_lshl_b32 s46, s46, 7""",
"""s_and_b32 s24, s2, 1
s_bfe_u32 s21, s2, 0x20001
s_lshl_b32 s21, s21, 2
s_bfe_u32 s3, s2, 0x20003
s_add_u32 s21, s21, s3
s_bfe_u32 s22, s2, 0x30005
s_lshl_b32 s46, s22, 7
s_lshl_b32 s3, s24, 10
s_add_u32 s46, s46, s3""",
"""s_and_b32 s24, s2, 3
s_bfe_u32 s21, s2, 0x10002
s_lshl_b32 s21, s21, 3
s_bfe_u32 s3, s2, 0x30003
s_add_u32 s21, s21, s3
s_bfe_u32 s22, s2, 0x20006
s_lshl_b32 s46, s22, 7
s_lshl_b32 s3, s24, 9
s_add_u32 s46, s46, s3"""]
def gemm_part(p, n):
    def acc(i, t): return (i * 4 + t) * 4
    XF = 32
    WF = 128
    AR = 144; VA = 148; VW = 150
    T = 152; LN_ = T + 1
    PL = T + 8; VZ = T + 9; VO = T + 10
    NS = 72
    P1 = int(os.environ.get("P1", "51")); P2 = int(os.environ.get("P2", "59"))
    p(f"""s_load_dwordx2 s[38:39], s[0:1], 16
s_load_dwordx2 s[40:41], s[0:1], 0
s_load_dwordx2 s[42:43], s[0:1], 56
{GMAPS[GMAP]}
v_lshrrev_b32 v{T+2}, 4, v{LN_}
v_lshrrev_b32 v{T+3}, 3, v{LN_}
v_bfe_u32 v{T+4}, v{LN_}, 1, 2
v_xor_b32 v{T+4}, v{T+4}, v{T+2}
v_and_b32 v{T+6}, 1, v{LN_}
v_lshl_or_b32 v{T+4}, v{T+4}, 1, v{T+6}
v_lshlrev_b32 v{VW}, 11, v{T+3}
v_lshl_add_u32 v{VW}, v{T+4}, 4, v{VW}
s_lshl_b32 s3, s20, 15
s_add_u32 s3, s3, s46
v_add_u32 v{VW}, s3, v{VW}
v_add_u32 v{VW+1}, 16384, v{VW}
s_mov_b32 s25, 0
s_lshl_b32 s29, s20, 11
s_lshl_b32 s3, s21, 3
s_lshl_b32 s26, s20, 1
s_add_u32 s23, s3, s26
s_mul_i32 s3, s23, {ACT_T}
s_add_u32 s3, s3, {ACT_OFF}
v_lshlrev_b32 v{T+5}, 4, v{LN_}
v_add_u32 v{VA}, s3, v{T+5}
v_add_u32 v{VA+1}, {ACT_T}, v{VA}
s_mov_b32 s26, {32*1024}
v_and_b32 v{VO}, 15, v{LN_}
v_lshlrev_b32 v{VO}, 11, v{VO}
v_lshl_add_u32 v{VO}, v{T+2}, 3, v{VO}
s_lshl_b32 s3, s23, 15
s_add_u32 s3, s3, s46
v_add_u32 v{VO}, s3, v{VO}
v_add_u32 v{VO+1}, 32768, v{VO}
s_waitcnt lgkmcnt(0)""")
    srd(p, 4, "s34", "s35", hex(WS_BYTES))
    srd(p, 8, "s36", "s37", hex(3584 * 2048))
    srd(p, 12, "s40", "s41", hex(4 << 20))
    def ldw(slot, j):
        p(f"s_add_u32 m0, s29, {slot*8192 + j*1024}")
        return f"buffer_load_dwordx4 v{VW+j}, s[8:11], s25 offen lds"
    def ldx(slot, k):
        return f"buffer_load_dwordx4 {r(XF + slot * 16 + k * 4)}, v{VA+(k>>1)}, s[4:7], s26 offen offset:{(k&1)*1024}"
    def advw(): p("s_add_u32 s25, s25, 131072")
    def advx(): p("s_add_u32 s26, s26, 2048")
    XR = XF
    def issue(s):
        for j in range(2): p(ldw(s, j))
        for k in range(4): p(ldx(s, k))
        advw(); advx()
    for s in range(GORD):
        issue(s)
        if s == 0 and not RES:
            for i in range(2):
                for t in range(4): p(f"buffer_load_dwordx2 {r(112+i*8+t*2,2)}, v{VO+i}, s[12:15], 0 offen offset:{t*32}")
    if RES:
        for x in range(32): p(f"v_mov_b32 v{x}, 0")
    p(f"""v_lshlrev_b32 v{T+14}, 3, v{T+2}
v_sub_u32 v{T+14}, v{VO}, v{T+14}
v_and_b32 v{T+15}, 1, v{T+2}
v_lshl_add_u32 v{T+14}, v{T+15}, 5, v{T+14}
v_lshrrev_b32 v{T+15}, 1, v{T+2}
v_lshl_add_u32 v{T+14}, v{T+15}, 4, v{T+14}
v_add_u32 v{T+15}, 32768, v{T+14}""")
    WST = int(os.environ.get("WST", "3"))
    if WST == 3:
        p(f"""s_lshl_b32 s3, s20, 13
v_and_b32 v{T+13}, 15, v{LN_}
v_mul_u32_u24 v{T+13}, 144, v{T+13}
v_lshl_add_u32 v{T+13}, v{T+2}, 3, v{T+13}
v_add_u32 v{T+13}, s3, v{T+13}
v_lshrrev_b32 v{T+15}, 3, v{LN_}
v_and_b32 v{T+14}, 7, v{LN_}
v_lshlrev_b32 v{T+14}, 4, v{T+14}
v_mul_u32_u24 v{T+12}, 144, v{T+15}
v_add3_u32 v{T+12}, v{T+12}, v{T+14}, s3
v_lshl_add_u32 v{T+14}, v{T+15}, 11, v{T+14}
s_lshl_b32 s60, s23, 15
s_add_u32 s60, s60, s46
s_add_u32 s61, s60, 16384
s_add_u32 s62, s60, 32768
s_add_u32 s63, s60, 49152""")
    elif TCH:
        p(f"v_mul_u32_u24 v{T+13}, 112, v{LN_}")
        p(f"v_add_u32 v{T+13}, v{T+13}, v{VA}")
    srd(p, 16, "s42", "s43", hex(4 << 20))
    p(f"""s_lshl_b32 s44, s21, 3
s_add_u32 s44, s44, s20
s_lshl_b32 s44, s44, 7
s_add_u32 s44, s44, {FLAG_OFF}
s_add_u32 s52, s44, 512
v_mov_b32 v{VZ}, 0
v_bfe_u32 v{T+3}, v{LN_}, 2, 2
v_lshl_add_u32 v{T+3}, v{T+2}, 2, v{T+3}
v_bfe_u32 v{T+4}, v{T+3}, 1, 2
v_and_b32 v{T+6}, 3, v{LN_}
v_lshlrev_b32 v{T+3}, 7, v{T+3}
v_lshl_add_u32 v{T+3}, v{T+6}, 3, v{T+3}""")
    for t in range(4):
        p(f"v_xor_b32 v{T+6}, {t}, v{T+4}")
        p(f"v_lshl_add_u32 v{AR+t}, v{T+6}, 5, v{T+3}")
    NB = int(os.environ.get("NB", "4"))
    def wb(s, t):
        k = (s * 8 + t) % NB
        return WF + k * 4 if k < 4 else T + (k - 4) * 4
    def rdw(s, t):
        slot = s % 6
        b = wb(s, t); off = slot * 8192 + (t >> 2) * 4096
        p(f"ds_read_b64_tr_b16 {r(b,2)}, v{AR+(t&3)} offset:{off}")
        p(f"ds_read_b64_tr_b16 {r(b+2,2)}, v{AR+(t&3)} offset:{off+2048}")
    p(f"s_waitcnt vmcnt({6*(GORD-1)})")
    p("s_barrier")
    for t in range(NB - 1): rdw(0, t)
    for s in range(GORD, 5): issue(s)
    if not RES:
        for x in range(16):
            p(f"v_lshlrev_b32 v{2*x}, 16, v{112+x}")
            p(f"v_and_b32 v{2*x+1}, 0xffff0000, v{112+x}")
    stamp(p, 1)
    def spin(tag, addr, val):
        p(f"""v_readfirstlane_b32 s3, v{PL}
s_cmp_ge_u32 s3, {val}
s_cbranch_scc1 {n}_{tag}_ok
{n}_{tag}_spin:
s_sleep 1
buffer_load_dword v{PL}, v{VZ}, s[4:7], {addr} offen sc1
s_waitcnt vmcnt(0)
v_readfirstlane_b32 s3, v{PL}
s_cmp_lt_u32 s3, {val}
s_cbranch_scc1 {n}_{tag}_spin
{n}_{tag}_ok:""")
    def step(s, q, vm):
        last = s == NS - 1
        p(f"s_waitcnt vmcnt({vm})")
        if not last: p("s_barrier")
        q = list(q)
        for t in range(8):
            b = wb(s, t)
            for i in range(2):
                pend = None
                if q and (i == 0 or len(q) > 7 - t):
                    kind, sl, idx = q.pop(0)
                    pend = ldw(sl, idx) if kind == "w" else (ldx(sl, idx) if kind == "x" else idx)
                    if kind == "x" and idx == 3: pend += "\ns_add_u32 s26, s26, 2048"
                    if kind == "w" and idx == 1: pend += "\ns_add_u32 s25, s25, 131072"
                a = acc(i, t & 3); xb = XF + (s % 6) * 16 + i * 8 + (t >> 2) * 4
                p(f"v_mfma_f32_16x16x32_bf16 {r(a)}, {r(b)}, {r(xb)}, {r(a)}")
                if pend: p(pend)
                if i == 1:
                    if t + NB - 1 < 8: rdw(s, t + NB - 1)
                    elif not last: rdw(s + 1, t + NB - 1 - 8)
        assert not q
    def QW(L): return [("w", L % 6, j) for j in range(2)]
    def QX(L): return [("x", L % 6, k) for k in range(4)]
    p("s_mov_b32 s30, 8")
    p(f"s_setprio {GPRIO}")
    p(f"{n}_gloop:")
    if GSCHED:
        for k, it in enumerate(GSCHED.split(",")):
            pr, rem = it.split(":")
            p(f"""s_cmp_lg_u32 s30, {rem}
s_cbranch_scc1 {n}_gp{k}
s_setprio {pr}
{n}_gp{k}:""")
    if FINE == 1:
        for k, rem in ((2, 8), (3, 6), (4, 4), (5, 2)):
            p(f"s_cmp_lg_u32 s30, {rem}\ns_cbranch_scc1 {n}_fs{k}")
            stamp(p, k)
            p(f"{n}_fs{k}:")
    for s in range(6): step(s, QW(s + 5) + QX(s + 5), 22)
    p(f"""s_sub_u32 s30, s30, 1
s_cmp_lg_u32 s30, 0
s_cbranch_scc1 {n}_gloop""")
    hist = []
    for L in range(48, 53): hist += [("w", L)] * 2 + [("x", L)] * 4
    def vmfor(tags):
        last = max(i for i, h in enumerate(hist) if h in tags)
        return len(hist) - 1 - last
    nx = 53
    for s in range(48, NS):
        L = s + 5
        if L == 56:
            p(f"""s_mov_b32 s8, s38
s_and_b32 s9, s39, 0xffff
s_mov_b32 s10, {1024*2048}
s_mov_b32 s25, 0""")
        for k, (ps, addr) in enumerate(((P1, "s44"), (P2, "s52"))):
            if s == ps:
                if not FINE: stamp(p, 2 + 2 * k)
                elif k == 0 and FINE == 1: stamp(p, 6)
                p(f"s_waitcnt vmcnt({vmfor([('poll', k)])})")
                spin("o%d" % k, addr, 16)
                if k == 0: p("s_mov_b32 s26, 0")
                if k == 1: p("s_setprio 3")
                if not FINE: stamp(p, 3 + 2 * k)
                if FINE == 2 and k == 1: stamp(p, 2)
        lim = min(L, NS - 1, 55 if s < P1 else (63 if s < P2 else NS))
        pre = []
        while nx <= lim - 1 and nx <= lim:
            pre.append(nx); nx += 1
        for x in pre:
            for k in range(4): p(ldx(x % 6, k))
            advx(); hist.extend([("x", x)] * 4)
        need = [("x", s)] + ([("w", s + 1)] if s + 1 < NS else [])
        vm = vmfor(need)
        q = []
        if L < NS: q += QW(L); hist += [("w", L)] * 2
        if nx <= lim: q += QX(nx); hist += [("x", nx)] * 4; nx += 1
        for k, (ps, addr) in enumerate(((P1, "s44"), (P2, "s52"))):
            if s == ps - 2:
                q.append(("i", 0, f"buffer_load_dword v{PL}, v{VZ}, s[4:7], {addr} offen sc1")); hist.append(("poll", k))
        for k, ps in enumerate((P1, P2)):
            if s == ps and (TCH >> k) & 1:
                for o_ in (8192, ACT_T + 8192, 0, ACT_T):
                    q.append(("i", 0, f"s_mov_b32 s60, {k*16384 + o_}\nbuffer_load_dword v{T+12}, v{T+13}, s[4:7], s60 offen")); hist.append(("t", 1))
        if s == 49 and RES:
            q.append(("i", 0, f"buffer_load_dword v{T+12}, v{VO}, s[12:15], 0 offen")); hist.append(("t", 0))
            q.append(("i", 0, f"buffer_load_dword v{T+12}, v{VO+1}, s[12:15], 0 offen")); hist.append(("t", 0))
        if s == 67 and RES:
            for i in range(2):
                for t in range(4):
                    q.append(("i", 0, f"buffer_load_dwordx2 {r(XR+i*8+t*2,2)}, v{VO+i}, s[12:15], 0 offen offset:{t*32}")); hist.append(("r", 0))
        if s == 71 and RES:
            need.append(("r", 0)); vm = vmfor(need)
            for i in range(2):
                for t in range(4):
                    xr = XR + i * 8 + t * 2; tq = XF + 16 + acc(i, t)
                    q.append(("i", 0, f"""v_lshlrev_b32 v{tq}, 16, v{xr}
v_and_b32 v{tq+1}, 0xffff0000, v{xr}
v_lshlrev_b32 v{tq+2}, 16, v{xr+1}
v_and_b32 v{tq+3}, 0xffff0000, v{xr+1}"""))
        if FINE == 2 and s in FS:
            p(f"s_waitcnt vmcnt({vm})"); stamp(p, 3 + FS.index(s))
        step(s, q, vm)
    if FINE == 2: stamp(p, 5)
    WST = int(os.environ.get("WST", "3"))
    for i in range(2):
        for t in range(4):
            a = acc(i, t); xr = XF + i * 8 + t * 2; tq = XF + 16 + a
            if RES: p(f"""v_pk_add_f32 {r(a,2)}, {r(a,2)}, {r(tq,2)}
v_pk_add_f32 {r(a+2,2)}, {r(a+2,2)}, {r(tq+2,2)}""")
            p(f"""v_cvt_pk_bf16_f32 v{xr}, v{a}, v{a+1}
v_cvt_pk_bf16_f32 v{xr+1}, v{a+2}, v{a+3}""")
            if not WST: p(f"buffer_store_dwordx2 {r(xr,2)}, v{VO+i}, s[16:19], 0 offen offset:{t*32}{STO}")
            elif WST == 3: p(f"ds_write_b64 v{T+13}, {r(xr,2)} offset:{i*2304 + t*32}")
            elif t & 1:
                p(f"""v_permlane16_swap_b32 v{xr-2}, v{xr}
v_permlane16_swap_b32 v{xr-1}, v{xr+1}
buffer_store_dwordx4 {r(xr-2,4)}, v{T+14+i}, s[16:19], 0 offen offset:{(t-1)*32}{STO}""")
    if WST == 3:
        for k in range(4): p(f"ds_read_b128 {r(XF+16+4*k)}, v{T+12} offset:{k*1152}")
        for k in range(4): p(f"buffer_store_dwordx4 {r(XF+16+4*k)}, v{T+14}, s[16:19], s{60+k} offen{STO}")
    if FINE == 2: p("s_waitcnt vmcnt(0)")
    if FINE != 1: stamp(p, 6)
    stamp_out(p, 7, 0, "s20", 2)
    p("s_endpgm")

def gen_k2():
    p = Prog(); n = "k2_kernel"; header(p, n)
    p(f"""s_setprio 3
s_load_dwordx2 s[34:35], s[0:1], 72
s_load_dwordx2 s[36:37], s[0:1], 48
s_cmp_ge_u32 s2, 768
s_cbranch_scc1 {n}_end""")
    stamp(p, 0)
    p(f"""v_lshrrev_b32 v152, 6, v0
v_and_b32 v153, 63, v0
v_readfirstlane_b32 s20, v152
s_lshr_b32 s3, s2, 8
s_cmp_eq_u32 s3, {GROLE}
s_cbranch_scc1 {n}_gemm""")
    if os.environ.get("ONLY") == "g": p("s_endpgm")
    attn_part(p, n)
    p(f"{n}_gemm:")
    if os.environ.get("ONLY") == "a": p("s_endpgm")
    gemm_part(p, n)
    p(f"{n}_end:")
    p("s_endpgm")
    return p.finalize() + descriptor(n, 168, 168), f"; @launch kernel={n} grid=(768,1,1) block=(256,1,1) lds={K2_LDS}"

def parts():
    r_ = [gen_k2()]
    return r_
```

```python
import sys, struct
sys.path.insert(0, "dev")
from asmlib import Prog

NAME = "parallel_sum__mha_block__glu_gated_swiglu__prompt"
XN_OFF = 0
QKV_OFF = 4 << 20
ACT_OFF = 16 << 20
ACT_T = 144 * 1024
WS_BYTES = 268435456
PART_OFF = 40 << 20
FLAG_OFF = 60 << 20
LOG2E = 1.4426950408889634
def f2u(f): return struct.unpack("<I", struct.pack("<f", f))[0]
def hx(f): return "0x%08x" % f2u(f)

def header(p, name):
    p(f""".text
.globl {name}
.p2align 8
.type {name},@function
{name}:""")

def descriptor(name, nvgpr, accum):
    return f""".section .rodata,"a"
.p2align 6
.amdhsa_kernel {name}
  .amdhsa_next_free_vgpr {nvgpr}
  .amdhsa_next_free_sgpr 102
  .amdhsa_accum_offset {accum}
  .amdhsa_group_segment_fixed_size 0
  .amdhsa_kernarg_size 80
  .amdhsa_user_sgpr_count 2
  .amdhsa_user_sgpr_kernarg_segment_ptr 1
  .amdhsa_system_sgpr_workgroup_id_x 1
.end_amdhsa_kernel
"""

def srd(p, s, lo, hi, nrec):
    p(f"s_mov_b32 s{s}, {lo}")
    p(f"s_and_b32 s{s+1}, {hi}, 0xffff")
    p(f"s_mov_b32 s{s+2}, {nrec}")
    p(f"s_mov_b32 s{s+3}, 0x00020000")

import os
DBG = int(os.environ.get("DBG", "0"))
PRO = int(os.environ.get("PRO", "0"))
STM = os.environ.get("STM", "")
STL = os.environ.get("STL", "")
STO = os.environ.get("STO", "")
def stamp(p, k):
    if DBG:
        p(f"s_memtime s[{80+2*k}:{81+2*k}]")
        if k == 0: p("s_memrealtime s[96:97]")
        p("s_waitcnt lgkmcnt(0)")
def stamp_out(p, nst, vt, wavesgpr, kidx=0):
    if not DBG: return
    p(f"""s_memrealtime s[98:99]
s_load_dwordx2 s[4:5], s[0:1], 72
s_getreg_b32 s6, hwreg(HW_REG_HW_ID)
s_getreg_b32 s7, hwreg(HW_REG_XCC_ID)
s_waitcnt lgkmcnt(0)""")
    srd(p, 8, "s4", "s5", hex(WS_BYTES))
    for k in range(1, nst): p(f"s_sub_u32 s{80+2*k}, s{80+2*k}, s80")
    p("s_and_b32 s6, s6, 0xffff")
    p("s_lshl_b32 s7, s7, 16")
    p("s_or_b32 s6, s6, s7")
    p(f"v_mov_b32 v{vt}, s96")
    p(f"v_mov_b32 v{vt+1}, s98")
    p(f"v_mov_b32 v{vt+2}, s6")
    ks = list(range(1, nst))[-5:]
    for i in range(5):
        p(f"v_mov_b32 v{vt+3+i}, " + (f"s{80+2*ks[i]}" if i < len(ks) else "0"))
    p(f"""s_lshl_b32 s3, s2, 5
s_add_u32 s3, s3, {(192<<20) + kidx*65536}
s_cmp_eq_u32 {wavesgpr}, 0
s_cselect_b32 s3, s3, {WS_BYTES}
v_mov_b32 v{vt+8}, 0
s_nop 3
buffer_store_dwordx4 v[{vt}:{vt+3}], v{vt+8}, s[8:11], s3 offen
buffer_store_dwordx4 v[{vt+4}:{vt+7}], v{vt+8}, s[8:11], s3 offen offset:16""")

def gen_ln():
    p = Prog(); n = "ln_kernel"; header(p, n)
    p(f"""s_cmp_ge_u32 s2, 256
s_cbranch_scc1 {n}_end
s_load_dwordx2 s[4:5], s[0:1], 0
s_load_dwordx2 s[6:7], s[0:1], 72
s_load_dwordx2 s[20:21], s[0:1], 8
s_load_dwordx4 s[24:27], s[0:1], 32
v_and_b32 v1, 63, v0
v_lshrrev_b32 v2, 6, v0
v_and_b32 v3, 7, v1
v_lshrrev_b32 v4, 3, v1
s_waitcnt lgkmcnt(0)""")
    srd(p, 8, "s4", "s5", hex(2048 * 1024 * 2))
    srd(p, 12, "s6", "s7", hex(WS_BYTES))
    p(f"""s_lshl_b32 s3, s2, 14
v_lshlrev_b32 v5, 11, v3
v_lshl_add_u32 v5, v2, 9, v5
v_lshl_add_u32 v5, v4, 4, v5""")
    for i in range(4):
        p(f"buffer_load_dwordx4 v[{8+4*i}:{11+4*i}], v5, s[8:11], s3 offen offset:{128*i}")
    p(f"""v_and_b32 v6, 3, v4
v_lshrrev_b32 v7, 2, v4
v_lshlrev_b32 v60, 13, v2
v_lshl_add_u32 v60, v7, 10, v60
v_lshl_add_u32 v60, v6, 8, v60
v_lshl_add_u32 v60, v3, 4, v60
s_lshr_b32 s16, s2, 1
s_lshl_b32 s16, s16, 15
s_and_b32 s17, s2, 1
s_lshl_b32 s17, s17, 7
s_add_u32 s16, s16, s17
v_lshlrev_b32 v61, 4, v3
v_lshl_add_u32 v62, v2, 2, v61
v_lshlrev_b32 v68, 2, v0
v_mov_b32 v69, 0
s_lshl_b32 s18, s2, 10
s_add_u32 s18, s18, {FLAG_OFF}
buffer_store_dword v69, v68, s[12:15], s18 offen""")
    NR = int(os.environ.get("NR", "0"))
    if NR:
        p("v_lshlrev_b32 v70, 7, v0")
        p("s_lshl_b32 s19, s2, 15")
        for k, (lo, pitch) in enumerate(((20, 6144), (24, 7168), (26, 7168))):
            srd(p, 28, f"s{lo}", f"s{lo+1}", hex(NR * pitch))
            p("v_add_u32 v70, s19, v70" if k == 0 else "s_nop 0")
            p("buffer_load_dword v71, v70, s[28:31], 0 offen")
    p(f"s_waitcnt vmcnt({4 if NR else 1})")
    for i in range(16):
        p(f"v_lshlrev_b32 v{24+2*i}, 16, v{8+i}")
        p(f"v_and_b32 v{25+2*i}, 0xffff0000, v{8+i}")
    def reduce(dst, ldsoff):
        p(f"""v_add_f32_dpp v{dst}, v{dst}, v{dst} row_ror:8 row_mask:0xf bank_mask:0xf
v_mov_b32 v63, v{dst}
v_permlane16_swap_b32 v{dst}, v63
v_add_f32 v{dst}, v{dst}, v63
v_mov_b32 v63, v{dst}
v_permlane32_swap_b32 v{dst}, v63
v_add_f32 v{dst}, v{dst}, v63
ds_write_b32 v62, v{dst} offset:{ldsoff}
s_waitcnt lgkmcnt(0)
s_barrier
ds_read_b128 v[64:67], v61 offset:{ldsoff}
v_add_f32 v64, v64, v65
v_add_f32 v66, v66, v67
v_add_f32 v{dst}, v64, v66""")
    p("v_pk_add_f32 v[56:57], v[24:25], v[26:27]")
    for i in range(2, 16):
        p(f"v_pk_add_f32 v[56:57], v[56:57], v[{24+2*i}:{25+2*i}]")
    p("v_add_f32 v56, v56, v57")
    reduce(56, 0)
    p(f"v_mul_f32 v56, {hx(1.0/1024)}, v56")
    p("v_mov_b32 v58, 0")
    p("v_mov_b32 v59, 0")
    for i in range(32):
        p(f"v_sub_f32 v{8+(i&7)}, v{24+i}, v56")
        p(f"v_fmac_f32 v{58+(i&1)}, v{8+(i&7)}, v{8+(i&7)}")
    p("v_add_f32 v58, v58, v59")
    reduce(58, 128)
    p(f"""v_mul_f32 v58, {hx(1.0/1024)}, v58
v_cvt_pk_bf16_f32 v57, v56, v58
v_lshlrev_b32 v56, 16, v57
v_and_b32 v58, 0xffff0000, v57
v_add_f32 v58, {hx(1e-5)}, v58
v_cvt_pk_bf16_f32 v58, v58, v58
v_and_b32 v58, 0xffff0000, v58
v_sqrt_f32 v58, v58
v_cvt_pk_bf16_f32 v58, v58, v58
v_and_b32 v58, 0xffff0000, v58
v_rcp_f32 v58, v58""")
    for i in range(16):
        a, b = 24 + 2 * i, 25 + 2 * i
        p(f"""v_sub_f32 v{a}, v{a}, v56
v_sub_f32 v{b}, v{b}, v56
v_cvt_pk_bf16_f32 v{8+i}, v{a}, v{b}
v_lshlrev_b32 v{a}, 16, v{8+i}
v_and_b32 v{b}, 0xffff0000, v{8+i}
v_mul_f32 v{a}, v{a}, v58
v_mul_f32 v{b}, v{b}, v58
v_cvt_pk_bf16_f32 v{8+i}, v{a}, v{b}""")
    for i in range(4):
        p(f"buffer_store_dwordx4 v[{8+4*i}:{11+4*i}], v60, s[12:15], s16 offen offset:{2048*(i&1)}{STL}")
        if i == 1: p("s_add_u32 s16, s16, 4096")
    p(f"{n}_end:")
    p("s_endpgm")
    return p.finalize() + descriptor(n, 72, 72), f"; @launch kernel={n} grid=(256,1,1) block=(256,1,1) lds=256"

STG = 36864
def gen_g1():
    p = Prog(); n = "g1_kernel"; header(p, n)
    def acc(i, j):
        if i < 5: b = (i * 10 + j) * 4; return f"v[{b}:{b+3}]"
        b = ((i - 5) * 10 + j) * 4; return f"a[{b}:{b+3}]"
    def xf(buf, i): b = 120 + buf * 32 + i * 4; return f"a[{b}:{b+3}]"
    def wf(j): return 184 + (j % 5) * 4
    VX, VP, VS, AX, AP, AS = 200, 204, 208, 209, 211, 219
    p(f"""s_cmp_ge_u32 s2, 256
s_cbranch_scc1 {n}_end""")
    stamp(p, 0)
    p(f"""s_load_dwordx2 s[32:33], s[0:1], 8
s_load_dwordx4 s[36:39], s[0:1], 32
s_load_dwordx2 s[34:35], s[0:1], 72
s_load_dwordx2 s[66:67], s[0:1], 48
s_load_dwordx2 s[68:69], s[0:1], 16
v_lshrrev_b32 v221, 6, v0
v_and_b32 v222, 63, v0
v_readfirstlane_b32 s20, v221
s_lshr_b32 s22, s2, 5""")
    CM = int(os.environ.get("CM", "0"))
    if CM == 0: p("""s_and_b32 s21, s2, 7
s_lshl_b32 s21, s21, 2
s_lshr_b32 s3, s2, 3
s_and_b32 s3, s3, 3
s_add_u32 s21, s21, s3""")
    elif CM == 1: p("s_and_b32 s21, s2, 31")
    else: p("""s_and_b32 s40, s2, 7
s_bfe_u32 s3, s2, 0x20003
s_lshl_b32 s21, s40, 1
s_add_u32 s21, s21, s3
s_add_u32 s21, s21, 9
s_cmp_eq_u32 s3, 0
s_cselect_b32 s21, s40, s21
s_cmp_lt_u32 s40, 2
s_cselect_b32 s41, 8, 24
s_add_u32 s41, s41, s40
s_cmp_eq_u32 s3, 3
s_cselect_b32 s21, s41, s21""")
    p("""s_mul_i32 s40, s21, 10
s_cmp_eq_u32 s21, 9
s_cselect_b32 s41, 1, 0
s_cmp_ge_u32 s21, 10
s_cselect_b32 s42, 1, 0
s_sub_u32 s45, s21, 10
s_lshr_b32 s46, s45, 1
s_mul_i32 s46, s46, 10
s_and_b32 s45, s45, 1
s_lshl_b32 s43, s45, 2
s_add_u32 s43, s43, s46
s_add_u32 s44, s46, 8
s_add_u32 s44, s44, s45""")
    def pair_info(hi, side, d_gu, d_blk):
        p(f"""s_or_b32 s47, s41, s42
s_cmp_lg_u32 {hi}, 0
s_cselect_b32 {d_gu}, s47, s42""")
        p(f"""s_cmp_lg_u32 s41, 0
s_cselect_b32 s47, 2, 4
s_mul_i32 s47, s47, {side}
s_lshl_b32 s48, {hi}, 1
s_add_u32 s47, s47, s48
s_add_u32 s47, s47, s40""")
        p(f"""s_add_u32 s48, s48, s43
s_cmp_lg_u32 s41, 0
s_cselect_b32 s48, 110, s48
s_cmp_lg_u32 {d_gu}, 0
s_cselect_b32 {d_blk}, s48, s47""")
    def single_info(side, d_gu, d_blk):
        p(f"""s_mov_b32 {d_gu}, s42
s_cmp_lg_u32 s41, 0
s_cselect_b32 s47, 4, 8
s_add_u32 s47, s47, s40
s_add_u32 s47, s47, {side}
s_cmp_lg_u32 s42, 0
s_cselect_b32 {d_blk}, s44, s47""")
    p("""s_and_b32 s50, s20, 1
s_lshr_b32 s51, s20, 1""")
    pair_info("s50", "s51", "s52", "s53")
    single_info("s51", "s54", "s55")
    p("s_waitcnt lgkmcnt(0)")
    if PRO: stamp(p, 2)
    def wsrd(s, gu, blk, pitch):
        p(f"""s_cmp_lg_u32 s51, 0
s_cselect_b32 s47, s38, s36
s_cselect_b32 s48, s39, s37
s_cmp_lg_u32 {gu}, 0
s_cselect_b32 s47, s47, s32
s_cselect_b32 s48, s48, s33
s_cselect_b32 {pitch}, 7, 6
s_lshl_b32 {pitch}, {pitch}, 10
s_lshl_b32 s49, {blk}, 6
s_add_u32 s{s}, s47, s49
s_addc_u32 s{s+1}, s48, 0
s_and_b32 s{s+1}, s{s+1}, 0xffff
s_lshl_b32 s{s+2}, {pitch}, 10
s_sub_u32 s{s+2}, s{s+2}, s49
s_mov_b32 s{s+3}, 0x00020000""")
    wsrd(8, "s52", "s53", "s56")
    wsrd(12, "s54", "s55", "s57")
    srd(p, 4, "s34", "s35", hex(4 << 20))
    srd(p, 16, "s34", "s35", hex(WS_BYTES))
    p("""s_lshl_b32 s26, s56, 5
s_lshl_b32 s27, s57, 5
s_mov_b32 s23, 0
s_mov_b32 s24, 0
s_mov_b32 s25, 0
s_lshl_b32 s29, s20, 12
s_lshl_b32 s31, s20, 10""")
    p(f"""s_lshl_b32 s3, s22, 4
s_lshl_b32 s47, s20, 2
s_add_u32 s3, s3, s47
s_lshl_b32 s3, s3, 15
v_lshlrev_b32 v223, 4, v222
v_add_u32 v{VX}, s3, v223""")
    for j in range(1, 4): p(f"v_add_u32 v{VX+j}, {32768*j}, v{VX}")
    p(f"""v_lshrrev_b32 v224, 3, v222
v_and_b32 v225, 7, v222
v_lshrrev_b32 v226, 1, v225
v_bfe_u32 v227, v224, 1, 1
v_xor_b32 v226, v226, v227
v_and_b32 v225, 1, v225
v_mul_lo_u32 v228, v224, s56
s_lshl_b32 s47, s56, 3""")
    for o in range(4):
        p(f"""v_xor_b32 v229, {2*(o&1)}, v226
v_lshl_or_b32 v229, v229, 1, v225
v_lshl_add_u32 v{VP+o}, v229, 4, v228""")
        if o < 3: p("v_add_u32 v228, s47, v228")
    p(f"""v_lshrrev_b32 v224, 2, v222
s_lshl_b32 s47, s50, 4
v_add_u32 v224, s47, v224
v_mul_lo_u32 v228, v224, s57
v_and_b32 v225, 3, v222
v_lshrrev_b32 v226, 5, v222
v_lshlrev_b32 v226, 1, v226
v_xor_b32 v225, v225, v226
v_lshl_add_u32 v{VS}, v225, 4, v228""")
    def dma(slot, idx):
        if idx < 4:
            p(f"s_add_u32 m0, s29, {slot*STG + idx*1024}")
            p(f"buffer_load_dwordx4 v{VX+idx}, s[4:7], s23 offen lds")
        elif idx < 8:
            p(f"s_add_u32 m0, s29, {slot*STG + 16384 + (idx-4)*1024}")
            p(f"buffer_load_dwordx4 v{VP+idx-4}, s[8:11], s24 offen lds")
        else:
            p(f"s_add_u32 m0, s31, {slot*STG + 32768}")
            p(f"buffer_load_dwordx4 v{VS}, s[12:15], s25 offen lds")
    def adv():
        p("""s_add_u32 s23, s23, 1024
s_add_u32 s24, s24, s26
s_add_u32 s25, s25, s27""")
    DORD = [4, 5, 6, 7, 8, 0, 1, 2, 3]
    if PRO: stamp(p, 3)
    for idx in DORD: dma(0, idx)
    adv()
    if PRO: stamp(p, 4)
    srd(p, 72, "s66", "s67", hex(3584 * 2048))
    p(f"""s_and_b32 s69, s69, 0xffff
s_lshl_b32 s3, s2, 2
s_add_u32 s3, s3, s20
s_mul_i32 s3, s3, 1280
v_lshlrev_b32 v232, 7, v222
v_add_u32 v232, s3, v232
v_mov_b32 v233, 0x40000000
v_cmp_gt_u32 vcc, 10, v222
v_cndmask_b32 v232, v233, v232, vcc""")
    def touch():
        p(f"""s_cmp_eq_u32 s28, 2
s_cselect_b32 s72, s68, s72
s_cselect_b32 s73, s69, s73
s_cselect_b32 s74, {1024*2048}, s74
s_cselect_b32 s3, -5, 1
s_mul_i32 s3, s3, 1310720
v_add_u32 v232, s3, v232
buffer_load_dword v233, v232, s[72:75], 0 offen""")
    p(f"""s_lshl_b32 s47, s51, 13
v_add_u32 v{AX}, s47, v223
v_add_u32 v{AX+1}, {2*STG}, v{AX}
v_lshrrev_b32 v224, 4, v222
v_bfe_u32 v225, v222, 2, 2
v_and_b32 v226, 3, v222
v_lshl_add_u32 v227, v224, 3, v225
v_lshrrev_b32 v228, 1, v225
v_and_b32 v229, 1, v224
v_lshl_or_b32 v228, v229, 1, v228
v_lshlrev_b32 v230, 7, v227
v_lshl_add_u32 v230, v226, 3, v230
s_lshl_b32 s47, s50, 12
v_add_u32 v230, s47, v230""")
    for t in range(4):
        p(f"""v_xor_b32 v231, {t}, v228
v_lshl_add_u32 v{AP+t}, v231, 5, v230
v_add_u32 v{AP+4+t}, {2*STG}, v{AP+t}""")
    p(f"""v_xor_b32 v229, s50, v229
v_lshlrev_b32 v230, 6, v227
v_lshl_add_u32 v230, v226, 3, v230
v_lshl_add_u32 v230, v229, 5, v230
v_add_u32 v{AS}, 32768, v230
v_add_u32 v{AS+1}, {32768+2*STG}, v230""")
    pair_info("s50", "0", "s60", "s61")
    pair_info("s50", "1", "s60", "s62")
    single_info("0", "s63", "s64")
    single_info("1", "s63", "s65")
    QS = (32 ** -0.5) * LOG2E
    p(f"""s_mov_b32 s70, {hx(-LOG2E)}
s_mov_b32 s71, {hx(-LOG2E)}
s_mov_b32 s78, 1.0
s_mov_b32 s79, 1.0
s_lshl_b32 s58, s22, 4
s_lshl_b32 s47, s51, 3
s_add_u32 s58, s58, s47
s_lshl_b32 s47, s50, 3
v_add_u32 v224, s47, v223
s_lshl_b32 s47, s51, 14
v_add_u32 v225, s47, v224
s_lshl_b32 s48, s50, 12
s_add_u32 s47, s47, s48
v_add_u32 v221, s47, v223""")
    CX = int(os.environ.get("CX", "1"))
    zs = [f"v_mov_b32 v{r}, 0" for r in range(200)] + [f"v_accvgpr_write_b32 a{r}, 0" for r in range(120)]
    ZD = int(os.environ.get("ZD", "17"))
    dq = [(s, idx) for s in (1, 2) for idx in DORD]
    for k, z in enumerate(zs):
        if k % ZD == 0 and dq:
            s_, idx = dq.pop(0); dma(s_, idx)
            if idx == DORD[-1]: adv()
        p(z)
    for s_, idx in dq:
        dma(s_, idx)
        if idx == DORD[-1]: adv()
    p("buffer_load_dword v233, v232, s[72:75], 0 offen")
    def rdx(slot, buf, i):
        p(f"ds_read_b128 {xf(buf, i)}, v{AX+(slot>>1)} offset:{(slot&1)*STG + i*1024}")
    def rdw(slot, j):
        t, side = j >> 1, j & 1
        b = wf(j)
        if t < 4:
            off = (slot & 1) * STG + 16384 + side * 8192; a = AP + 4 * (slot >> 1) + t; d = 512
        else:
            off = (slot & 1) * STG + side * 2048; a = AS + (slot >> 1); d = 256
        p(f"ds_read_b64_tr_b16 a[{b}:{b+1}], v{a} offset:{off}")
        p(f"ds_read_b64_tr_b16 a[{b+2}:{b+3}], v{a} offset:{off+d}")
    stamp(p, 5 if PRO else 1)
    p("s_waitcnt vmcnt(19)")
    p("s_barrier")
    stamp(p, 6 if PRO else 2)
    for j in range(3): rdw(0, j)
    for i in range(8): rdx(0, 0, i)
    def stage(slot, do_dma, vm, last=False):
        buf = slot & 1
        nslot = (slot + 1) & 3
        if not last:
            p(f"s_waitcnt vmcnt({vm})")
            p("s_barrier")
        dq = list(DORD) if do_dma else []
        for j in range(10):
            for i in range(8):
                b = wf(j)
                p(f"v_mfma_f32_16x16x32_bf16 {acc(i,j)}, a[{b}:{b+3}], {xf(buf,i)}, {acc(i,j)}")
                if i == 0:
                    if j + 3 < 10: rdw(slot, j + 3)
                    elif not last: rdw(nslot, j + 3 - 10)
                if i == 4 and 1 <= j <= 8 and not last: rdx(nslot, buf ^ 1, j - 1)
                if i in (2, 6) and dq: dma((slot + 3) & 3, dq.pop(0))
        if do_dma: adv()
    p("s_mov_b32 s28, 7")
    p(f"{n}_loop:")
    for s in range(4): stage(s, True, 10 if s < 2 else 9)
    touch()
    p(f"""s_sub_u32 s28, s28, 1
s_cmp_lg_u32 s28, 0
s_cbranch_scc1 {n}_loop""")
    if not PRO: stamp(p, 3)
    OVL = int(os.environ.get("OVL", "1"))
    stage(0, True, 10)
    if not OVL:
        stage(1, False, 10)
        stage(2, False, 0)
        stage(3, False, 0, last=True)
    if not PRO: stamp(p, 4)
    def flagz(p):
        p(f"""v_lshrrev_b32 v226, 2, v223
v_mov_b32 v227, 0
s_lshl_b32 s3, s2, 10
s_lshl_b32 s47, s20, 8
s_add_u32 s3, s3, s47
s_add_u32 s3, s3, {FLAG_OFF}
buffer_store_dword v227, v226, s[16:19], s3 offen""")
    if not OVL: flagz(p)
    if not OVL: p("s_nop 7")
    T0 = 226
    class Sink:
        def __init__(self): self.l = []; self.req = 0; self.base = 0
        def __call__(self, text):
            for x in text.split("\n"):
                if x.strip(): self.l.append((x.strip(), self.req))
        def row(self, i): self.req = max(self.req, self.base + 4 * (i + 1) + 2)
    def getacc(p, i, j, tmp):
        if i < 5: return (i * 10 + j) * 4
        b = ((i - 5) * 10 + j) * 4
        for e in range(4): p(f"v_accvgpr_read_b32 v{tmp+e}, a{b+e}")
        return tmp
    def qkv_group(p, tiles, blkG, blkU, boff, vo):
        for side, blk in ((0, blkG), (1, blkU)):
            p(f"""s_add_u32 s47, {blk}, {boff}
s_cmp_lt_u32 s47, 32
s_cselect_b32 s76, {hx(QS)}, 1.0
s_mov_b32 s77, s76
s_lshl_b32 s74, s47, 17
s_lshl_b32 s47, s58, 10
s_add_u32 s74, s74, s47
s_add_u32 s74, s74, {QKV_OFF}""")
            for i in range(8):
                if isinstance(p, Sink): p.row(i)
                o = T0 + 8 + (i & 1) * 4
                for k, t in enumerate(tiles):
                    r = getacc(p, i, 2 * t + side, T0 + 4 * k)
                    p(f"v_pk_mul_f32 v[{r}:{r+1}], v[{r}:{r+1}], s[76:77]")
                    p(f"v_pk_mul_f32 v[{r+2}:{r+3}], v[{r+2}:{r+3}], s[76:77]")
                    p(f"v_cvt_pk_bf16_f32 v{o+2*k}, v{r}, v{r+1}")
                    p(f"v_cvt_pk_bf16_f32 v{o+2*k+1}, v{r+2}, v{r+3}")
                if len(tiles) == 2: p(f"buffer_store_dwordx4 v[{o}:{o+3}], v{vo}, s[16:19], s74 offen offset:{(i&3)*1024}{STM}")
                elif CX: p(f"ds_write_b64 v225, v[{o}:{o+1}] offset:{side*8192 + i*1024}")
                else: p(f"buffer_store_dwordx2 v[{o}:{o+1}], v{vo}, s[16:19], s74 offen offset:{(i&3)*1024}{STM}")
                if i == 3: p("s_add_u32 s74, s74, 4096")
    def gu_group(p, tiles, blk, boff, vo):
        p(f"""s_add_u32 s47, {blk}, {boff+32}
s_lshl_b32 s74, s47, 10
s_mul_i32 s47, s58, {ACT_T}
s_add_u32 s74, s74, s47
s_add_u32 s74, s74, {ACT_OFF}""")
        for i in range(8):
            if isinstance(p, Sink): p.row(i)
            o = T0 + 16 + (i & 1) * 4
            for k, t in enumerate(tiles):
                g = getacc(p, i, 2 * t, T0)
                u = getacc(p, i, 2 * t + 1, T0 + 4)
                e = T0 + 8 + 4 * (k & 1)
                p(f"v_pk_mul_f32 v[{e}:{e+1}], v[{g}:{g+1}], s[70:71]")
                p(f"v_pk_mul_f32 v[{e+2}:{e+3}], v[{g+2}:{g+3}], s[70:71]")
                for x in range(4): p(f"v_exp_f32 v{e+x}, v{e+x}")
                p(f"v_pk_mul_f32 v[{g}:{g+1}], v[{g}:{g+1}], v[{u}:{u+1}]")
                p(f"v_pk_mul_f32 v[{g+2}:{g+3}], v[{g+2}:{g+3}], v[{u+2}:{u+3}]")
                p(f"v_pk_add_f32 v[{e}:{e+1}], v[{e}:{e+1}], s[78:79]")
                p(f"v_pk_add_f32 v[{e+2}:{e+3}], v[{e+2}:{e+3}], s[78:79]")
                for x in range(4): p(f"v_rcp_f32 v{e+x}, v{e+x}")
                p(f"v_pk_mul_f32 v[{g}:{g+1}], v[{g}:{g+1}], v[{e}:{e+1}]")
                p(f"v_pk_mul_f32 v[{g+2}:{g+3}], v[{g+2}:{g+3}], v[{e+2}:{e+3}]")
                p(f"v_cvt_pk_bf16_f32 v{o+2*k}, v{g}, v{g+1}")
                p(f"v_cvt_pk_bf16_f32 v{o+2*k+1}, v{g+2}, v{g+3}")
            if len(tiles) == 2: p(f"buffer_store_dwordx4 v[{o}:{o+3}], v{vo}, s[16:19], s74 offen{STM}")
            elif CX: p(f"ds_write_b64 v225, v[{o}:{o+1}] offset:{i*1024}")
            else: p(f"buffer_store_dwordx2 v[{o}:{o+1}], v{vo}, s[16:19], s74 offen{STM}")
            if i < 7: p(f"s_add_u32 s74, s74, {ACT_T}")
    B2 = int(os.environ.get("B2", "44")); TC = int(os.environ.get("TC", "8")); SP = int(os.environ.get("SP", "12")); WD = int(os.environ.get("WD", "20"))
    def tail(kind):
        XB = {1: 152, 2: 120, 3: 204}
        def ws(f): f %= 10; return 184 + f * 4 if f < 5 else 236 + (f - 5) * 4
        M = []; frag = []
        bases = []
        for js in ((0, 1, 2, 3), (4, 5, 6, 7), (8, 9)):
            for slot in (1, 2, 3):
                f0 = len(frag); m0 = len(M)
                if slot == 3:
                    bases.append(m0)
                    order = [(i, k) for i in range(8) for k in range(len(js))]
                else: order = [(i, k) for k in range(len(js)) for i in range(8)]
                fu = {}; lu = {}
                for (i, k) in order:
                    fu.setdefault(k, len(M)); lu[k] = len(M)
                    w = ws(f0 + k); x = XB[slot] + 4 * i
                    M.append([f"v_mfma_f32_16x16x32_bf16 {acc(i, js[k])}, a[{w}:{w+3}], a[{x}:{x+3}], {acc(i, js[k])}"])
                for k, j in enumerate(js): frag.append((slot, j, fu[k], lu[k]))
        S = Sink()
        def rd_w(slot, j, b):
            t, side = j >> 1, j & 1
            if t < 4: off = (slot & 1) * STG + 16384 + side * 8192; a = AP + 4 * (slot >> 1) + t; d = 512
            else: off = (slot & 1) * STG + side * 2048; a = AS + (slot >> 1); d = 256
            return [f"ds_read_b64_tr_b16 a[{b}:{b+1}], v{a} offset:{off}", f"ds_read_b64_tr_b16 a[{b+2}:{b+3}], v{a} offset:{off+d}"]
        def rd_x(slot, i): return [f"ds_read_b128 a[{XB[slot]+4*i}:{XB[slot]+4*i+3}], v{AX+(slot>>1)} offset:{(slot&1)*STG + i*1024}"]
        M[B2] += ["s_waitcnt vmcnt(0)", "s_barrier"]
        for i in range(8): M[2 + 2 * i] += rd_x(2, i)
        nxt = B2
        for f, (slot, j, fu, lu) in enumerate(frag):
            if f < 3: continue
            at = max(fu - WD, 0)
            if f >= 10: at = max(at, frag[f - 10][3] + 1)
            if slot == 3 and at <= nxt and f < 12: at = nxt; nxt += 1
            assert at < fu and (slot != 3 or at >= B2)
            M[at] += rd_w(slot, j, ws(f))
            if f == 8:
                M[nxt] += rd_x(3, 0); nxt += 1
        for i in range(1, 8): M[nxt] += rd_x(3, i); nxt += 1
        assert nxt < 64
        flagz(S); S.l = [(x, B2 + 1) for x, _ in S.l]
        for g in range(2):
            S.base = bases[g]; S.row(0); n0 = len(S.l)
            if kind == "gu": gu_group(S, (2 * g, 2 * g + 1), "s61", g, 223)
            else: qkv_group(S, (2 * g, 2 * g + 1), "s61", "s62", g, 223)
            mod = os.environ.get("SA" if g == 0 else "SB", "")
            if mod: S.l[n0:] = [(x + " " + mod if x.startswith("buffer_store") else x, rq) for x, rq in S.l[n0:]]
        mi = 0; credit = 0
        for line, req in S.l:
            while mi < min(req, len(M)):
                p("\n".join(M[mi])); mi += 1; credit = 0
            if credit >= SP and mi < len(M):
                p("\n".join(M[mi])); mi += 1; credit = 0
            p(line)
            credit += TC if line.startswith(("v_exp", "v_rcp")) else (4 if line.startswith(("v_", "buffer")) else 1)
        while mi < len(M): p("\n".join(M[mi])); mi += 1
        p("s_nop 7")
    def creg(side, ii): return (ii * 10 + 8 + side) * 4
    def c_part():
        p(f"""s_nop 3
s_cmp_lg_u32 s63, 0
s_cbranch_scc1 {n}_gu_c""")
        qkv_group(p, (4,), "s64", "s65", 0, 224)
        p(f"s_branch {n}_c2")
        p(f"{n}_gu_c:")
        gu_group(p, (4,), "s64", 0, 224)
        p(f"{n}_c2:")
        if CX:
            p("s_waitcnt lgkmcnt(0)")
            p("s_barrier")
            for side in range(2):
                for ii in range(4): p(f"ds_read_b128 v[{creg(side,ii)}:{creg(side,ii)+3}], v221 offset:{side*8192 + ii*1024}")
    def c_fin():
        if not CX: return
        p(f"""s_cmp_lg_u32 s63, 0
s_cbranch_scc1 {n}_gu_f""")
        for side, blk in ((0, "s64"), (1, "s65")):
            p(f"""s_lshl_b32 s74, {blk}, 17
s_lshl_b32 s47, s58, 10
s_add_u32 s74, s74, s47
s_lshl_b32 s47, s50, 12
s_add_u32 s74, s74, s47
s_add_u32 s74, s74, {QKV_OFF}
s_waitcnt lgkmcnt(0)""")
            for ii in range(4): p(f"buffer_store_dwordx4 v[{creg(side,ii)}:{creg(side,ii)+3}], v223, s[16:19], s74 offen offset:{ii*1024}{STM}")
        p(f"""s_branch {n}_fin
{n}_gu_f:
s_add_u32 s47, s64, 32
s_lshl_b32 s74, s47, 10
s_lshl_b32 s47, s50, 2
s_add_u32 s47, s47, s58
s_mul_i32 s47, s47, {ACT_T}
s_add_u32 s74, s74, s47
s_add_u32 s74, s74, {ACT_OFF}
s_waitcnt lgkmcnt(0)""")
        for ii in range(4):
            p(f"buffer_store_dwordx4 v[{creg(0,ii)}:{creg(0,ii)+3}], v223, s[16:19], s74 offen{STM}")
            if ii < 3: p(f"s_add_u32 s74, s74, {ACT_T}")
    if OVL:
        p("s_waitcnt vmcnt(10) lgkmcnt(0)")
        p("s_barrier")
    elif CX: c_part()
    p(f"""s_cmp_lg_u32 s60, 0
s_cbranch_scc1 {n}_gu_ab""")
    if OVL: tail("qkv")
    else:
        qkv_group(p, (0, 1), "s61", "s62", 0, 223)
        qkv_group(p, (2, 3), "s61", "s62", 1, 223)
    p(f"s_branch {n}_c")
    p(f"{n}_gu_ab:")
    if OVL: tail("gu")
    else:
        gu_group(p, (0, 1), "s61", 0, 223)
        gu_group(p, (2, 3), "s61", 1, 223)
    p(f"{n}_c:")
    if OVL or not CX: c_part()
    c_fin()
    p(f"{n}_fin:")
    if not PRO: stamp(p, 5)
    if DBG: p("s_waitcnt vmcnt(0)")
    if not PRO: stamp(p, 6)
    stamp_out(p, 7, 0, "s20", 1)
    p(f"{n}_end:")
    p("s_endpgm")
    return p.finalize() + descriptor(n, 512, 256), f"; @launch kernel={n} grid=(256,1,1) block=(256,1,1) lds={4*STG}"

def build(parts, path):
    hdr = open(f"cdna_kernels/{NAME}.s.ref").read().split("; Override launch")[0]
    txt = hdr + "\n".join(l for _, l in parts) + "\n" + '.amdgcn_target "amdgcn-amd-amdhsa--gfx950"\n' + "".join(c for c, _ in parts)
    open(path, "w").write(txt)
    print("wrote", path, len(txt))

if __name__ == "__main__":
    parts = [gen_ln(), gen_g1()]
    try:
        import gen2
        parts += gen2.parts()
    except ImportError:
        pass
    build(parts, sys.argv[1] if len(sys.argv) > 1 else f"cdna_kernels/{NAME}.s")
```

```python
import sys, os
sys.path.insert(0, "dev")
from asmlib import Prog
from gen import *

ASTG = 16384
K2_LDS = 49152 + 1024
GPRIO = int(os.environ.get("GPRIO", "0"))
APRIO = os.environ.get("APRIO", "3/1:16")
GSCHED = os.environ.get("GSCHED", "2:2")
XSC = os.environ.get("XSC", "")
TOUCH = os.environ.get("TOUCH", "")
GROLE = int(os.environ.get("GROLE", "2"))
FS = [int(x) for x in os.environ.get("FS", "64,69").split(",")]
TW = int(os.environ.get("TW", "1")); KT = int(os.environ.get("KT", "1")); R1 = int(os.environ.get("R1", "768")); R2 = int(os.environ.get("R2", "2560"))
RES = int(os.environ.get("RES", "0"))
TCH = int(os.environ.get("TCH", "0"))
OPRIO = int(os.environ.get("OPRIO", "0"))
HACK = os.environ.get("HACK", "")
FINE = int(os.environ.get("FINE", "0"))
AORD = int(os.environ.get("AORD", "1"))
GORD = int(os.environ.get("GORD", "2"))
def r(b, k=4): return f"v[{b}:{b+k-1}]"

def attn_part(p, n):
    S = [0, 16]; O = [32, 48]; P = [64, 72]; KF = [80, 88]; VF = [96, 104]; L = [112, 116]; Q = [120, 128]
    SEL = 136; VD = 140; AK, AV0, AV1 = 142, 143, 144; BK, BV0, BV1 = 145, 146, 147; NK = 148; NM = 150
    T = 152; LN_ = T + 1; KL = T + 10
    if TW == 6: p("s_load_dwordx2 s[52:53], s[0:1], 16")
    p(f"""s_and_b32 s21, s2, 7
s_lshl_b32 s21, s21, 1
s_bfe_u32 s3, s2, 0x10003
s_add_u32 s21, s21, s3
s_lshr_b32 s41, s2, {8 if GROLE == 2 else 9}
s_lshl_b32 s3, s41, 4
s_add_u32 s21, s21, s3
s_bfe_u32 s22, s2, 0x40004
s_and_b32 s23, s20, 1
s_lshr_b32 s24, s20, 1
s_mov_b32 s40, 0
v_lshlrev_b32 v{VD}, 4, v{LN_}
v_lshrrev_b32 v{T+2}, 4, v{LN_}
v_lshlrev_b32 v{T+3}, 2, v{T+2}
v_xor_b32 v{T+3}, v{T+3}, v{LN_}
v_lshlrev_b32 v{VD+1}, 4, v{T+3}
v_add_u32 v{VD+1}, {32*131072}, v{VD+1}
s_add_u32 s25, s21, 32
s_lshl_b32 s25, s25, 17
s_add_u32 s25, s25, {QKV_OFF}
s_lshl_b32 s26, s24, 16
s_add_u32 s25, s25, s26
s_lshl_b32 s26, s23, 11
s_add_u32 s25, s25, s26
s_lshl_b32 s27, s24, 13
s_add_u32 s27, s27, s26
s_waitcnt lgkmcnt(0)""")
    srd(p, 4, "s34", "s35", hex(WS_BYTES))
    def dma_stage(slot_sgpr):
        p(f"s_add_u32 s3, s27, {slot_sgpr}")
        for kv in range(2):
            p(f"s_add_u32 m0, s3, {kv*4096}")
            p(f"buffer_load_dwordx4 v{VD+kv}, s[4:7], s28 offen lds")
            p(f"buffer_load_dwordx4 v{VD+kv}, s[4:7], s28 offen offset:1024 lds")
        p("s_add_u32 s28, s28, 4096")
    def start_dma():
        p("s_mov_b32 s28, s25")
        dma_stage("0")
    start_dma()
    p(f"""v_bfe_u32 v{T+2}, v{LN_}, 4, 1
v_lshrrev_b32 v{T+3}, 5, v{LN_}
v_and_b32 v{T+4}, 15, v{LN_}
v_lshlrev_b32 v{KL}, 10, v{T+2}
v_lshl_add_u32 v{KL}, v{T+3}, 8, v{KL}
v_lshl_add_u32 v{KL}, v{T+4}, 4, v{KL}
s_lshl_b32 s26, s21, 17
s_add_u32 s26, s26, {QKV_OFF}
s_lshl_b32 s3, s22, 13
s_add_u32 s26, s26, s3
s_lshl_b32 s3, s23, 12
s_add_u32 s26, s26, s3""")
    for b in range(2):
        for x in range(2):
            p(f"buffer_load_dwordx4 {r(Q[b]+4*x)}, v{KL}, s[4:7], s26 offen offset:{b*2048+x*512}")
    dma_stage(str(ASTG))
    if not AORD: dma_stage(str(2*ASTG))
    p(f"""s_lshl_b32 s26, s24, 13
v_add_u32 v{BK}, s26, v{KL}
v_and_b32 v{T+5}, 3, v{LN_}
v_bfe_u32 v{T+6}, v{LN_}, 2, 2
v_xor_b32 v{T+7}, v{T+3}, v{T+5}
v_lshl_add_u32 v{T+7}, v{T+7}, 2, v{T+6}
v_lshlrev_b32 v{BV0}, 8, v{T+5}
v_lshl_add_u32 v{BV0}, v{T+7}, 4, v{BV0}
v_lshl_add_u32 v{BV0}, v{T+2}, 3, v{BV0}
s_add_u32 s26, s26, 4096
v_add_u32 v{BV0}, s26, v{BV0}
v_xor_b32 v{BV1}, 128, v{BV0}
v_bfe_u32 v{T+5}, v{LN_}, 2, 1
v_cmp_eq_u32 vcc, v{T+5}, v{T+2}
v_mov_b32 v{T+6}, 0x3f803f80
v_cndmask_b32 v{SEL}, 0, v{T+6}, vcc
v_mov_b32 v{SEL+1}, v{SEL}
v_mov_b32 v{SEL+2}, v{SEL}
v_mov_b32 v{SEL+3}, v{SEL}""")
    if TW == 6:
        srd(p, 48, "s36", "s37", hex(3584 * 2048))
        srd(p, 52, "s52", "s53", hex(1024 * 2048))
        n1 = (R2 - R1) // 64
        p(f"""s_and_b32 s56, s2, 255
s_lshl_b32 s56, s56, 2
s_add_u32 s56, s56, s20
s_mul_i32 s3, s56, {n1*128}
s_add_u32 s3, s3, {R1*2048}
s_cmp_eq_u32 s41, {KT}
s_cselect_b32 s26, {n1}, 0
v_lshlrev_b32 v{T+8}, 7, v{LN_}
v_add_u32 v{T+8}, s3, v{T+8}
v_mov_b32 v{T+9}, 0x40000000
v_cmp_gt_u32 vcc, s26, v{LN_}
v_cndmask_b32 v{T+8}, v{T+9}, v{T+8}, vcc""")
    def rdk(buf, areg, kblk):
        p(f"ds_read_b128 {r(KF[buf])}, v{areg} offset:{kblk*2048}")
        p(f"ds_read_b128 {r(KF[buf]+4)}, v{areg} offset:{kblk*2048+512}")
    def rdv(buf, kblk):
        for x in range(2):
            p(f"ds_read_b64_tr_b16 {r(VF[buf]+4*x,2)}, v{AV0} offset:{kblk*2048+x*1024}")
            p(f"ds_read_b64_tr_b16 {r(VF[buf]+4*x+2,2)}, v{AV1} offset:{kblk*2048+x*1024}")
    def qk(b, buf, x):
        c = "0" if x == 0 else r(S[b], 16)
        p(f"v_mfma_f32_32x32x16_bf16 {r(S[b],16)}, {r(KF[buf]+4*x)}, {r(Q[b]+4*x)}, {c}")
    def pv(b, buf, x):
        p(f"v_mfma_f32_32x32x16_bf16 {r(O[b],16)}, {r(VF[buf]+4*x)}, {r(P[b]+4*x)}, {r(O[b],16)}")
    def sm(b, x):
        p(f"v_mfma_f32_16x16x32_bf16 {r(L[b])}, {r(SEL)}, {r(P[b]+4*x)}, {r(L[b])}")
    def ex(b, x, part, sub):
        base = S[b] + 8 * x + 4 * part
        if sub:
            for e in range(4): p(f"v_sub_f32 v{base+e}, v{base+e}, v{NM+b}")
        for e in range(4): p(f"v_exp_f32 v{base+e}, v{base+e}")
    def cv(b, x, part):
        base = S[b] + 8 * x + 4 * part
        for e in range(2): p(f"v_cvt_pk_bf16_f32 v{P[b]+4*x+2*part+e}, v{base+2*e}, v{base+2*e+1}")
    def mainloop(tag, sub):
        for b in range(2):
            for e in range(16): p(f"v_mov_b32 v{O[b]+e}, 0")
            for e in range(4): p(f"v_mov_b32 v{L[b]+e}, 0")
        for e in range(8): p(f"v_mov_b32 v{P[1]+e}, 0")
        for e in range(8): p(f"v_mov_b32 v{VF[1]+e}, 0")
        p(f"s_waitcnt vmcnt({4 if AORD else 8})")
        p("s_barrier")
        if not sub: stamp(p, 1)
        rdk(0, BK, 0)
        if AORD: dma_stage(str(2*ASTG))
        if TW == 6 and not sub and R2 > R1: p(f"buffer_load_dword v{T+9}, v{T+8}, s[48:51], 0 offen")
        qk(0, 0, 0); qk(0, 0, 1)
        p(f"""s_mov_b32 s29, 0
s_mov_b32 s30, {ASTG}
s_mov_b32 s31, {2*ASTG}
s_mov_b32 s33, 16""")
        p(f"{n}_{tag}loop:")
        if APRIO and not sub:
            for k, it in enumerate(APRIO.split(",")):
                pr, rem = it.split(":")
                p1, p2 = (pr.split("/") * 2)[:2]
                p(f"""s_cmp_lg_u32 s33, {rem}
s_cbranch_scc1 {n}_ap{k}
s_setprio {p1}""")
                if p2 != p1: p(f"""s_cmp_eq_u32 s41, 0
s_cbranch_scc1 {n}_ap{k}
s_setprio {p2}""")
                p(f"{n}_ap{k}:")
        p(f"""v_add_u32 v{AK}, s29, v{BK}
v_add_u32 v{AV0}, s29, v{BV0}
v_add_u32 v{AV1}, s29, v{BV1}
v_add_u32 v{NK}, s30, v{BK}""")
        for kb in range(2):
            cur, nxt = kb & 1, (kb & 1) ^ 1
            rdv(cur, kb)
            for x in range(2):
                qk(1, cur, x)
                ex(0, x, 0, sub)
                pv(1, nxt, x)
                ex(0, x, 1, sub)
                cv(0, x, 0)
                sm(1, x)
                cv(0, x, 1)
                if x == 0:
                    if kb < 1: rdk(nxt, AK, kb + 1)
                    else:
                        p(f"""s_cmp_le_u32 s33, 3
s_cbranch_scc1 {n}_{tag}nodma
s_waitcnt vmcnt(4) lgkmcnt(0)
s_barrier""")
                        dma_stage("s29")
                        p(f"""s_branch {n}_{tag}join
{n}_{tag}nodma:
s_waitcnt vmcnt(0) lgkmcnt(0)
s_barrier
{n}_{tag}join:""")
                        rdk(nxt, NK, 0)
            for x in range(2):
                qk(0, nxt, x)
                ex(1, x, 0, sub)
                pv(0, cur, x)
                ex(1, x, 1, sub)
                cv(1, x, 0)
                sm(0, x)
                cv(1, x, 1)
        p(f"""s_mov_b32 s3, s29
s_mov_b32 s29, s30
s_mov_b32 s30, s31
s_mov_b32 s31, s3
s_sub_u32 s33, s33, 1
s_cmp_lg_u32 s33, 0
s_cbranch_scc1 {n}_{tag}loop""")
        for x in range(2):
            pv(1, 1, x)
            sm(1, x)
    mainloop("a", False)
    p(f"{n}_merge:")
    p("s_setprio 3")
    stamp(p, 2)
    F = T + 12
    p(f"""s_mul_i32 s26, s20, 4608
v_lshlrev_b32 v{T+2}, 4, v{LN_}
v_lshlrev_b32 v{T+3}, 2, v{LN_}
s_xor_b32 s3, s20, 2
s_mul_i32 s3, s3, 4608
v_add_u32 v{T+4}, s3, v{T+2}
v_add_u32 v{T+5}, s3, v{T+3}
v_add_u32 v{T+2}, s26, v{T+2}
v_add_u32 v{T+3}, s26, v{T+3}
s_waitcnt lgkmcnt(0)
s_barrier
s_cmp_lg_u32 s24, 0
s_cbranch_scc1 {n}_h1""")
    def fin(mine, other):
        p("s_nop 7")
        for e in range(4): p(f"ds_write_b128 v{T+2}, {r(O[other]+4*e)} offset:{e*1024}")
        p(f"ds_write_b32 v{T+3}, v{L[other]} offset:4096")
        p(f"""v_bfe_u32 v{F}, v{LN_}, 4, 1
v_mul_u32_u24 v{F}, {ACT_T}, v{F}
v_lshrrev_b32 v{F+1}, 5, v{LN_}
v_lshl_add_u32 v{F}, v{F+1}, 8, v{F}
v_and_b32 v{F+1}, 15, v{LN_}
v_lshl_add_u32 v{F}, v{F+1}, 4, v{F}
s_lshl_b32 s3, s22, 3
s_lshl_b32 s26, s23, 2
s_add_u32 s3, s3, s26
s_add_u32 s3, s3, {2*mine}
s_mul_i32 s3, s3, {ACT_T}
s_lshl_b32 s26, s21, 10
s_add_u32 s3, s3, s26
s_add_u32 s26, s3, {ACT_OFF}
s_waitcnt lgkmcnt(0)
s_barrier""")
        p(f"ds_read_b32 v{S[1]}, v{T+5} offset:4096")
        for e in range(4): p(f"ds_read_b128 {r(S[0]+4*e)}, v{T+4} offset:{e*1024}")
        p(f"""v_add_f32 v{S[1]}, v{S[1]}, v{L[mine]}
v_mov_b32 v{T+7}, {hx(2.0**60)}
v_cmp_nlt_f32 vcc, v{S[1]}, v{T+7}
s_mov_b64 s[36:37], vcc
v_mov_b32 v{T+7}, {hx(2.0**-60)}
v_cmp_ngt_f32 vcc, v{S[1]}, v{T+7}
s_or_b64 s[36:37], s[36:37], vcc
s_cmp_lg_u64 s[36:37], 0
s_cselect_b32 s38, 1, 0
v_mov_b32 v{T+6}, s38
s_lshl_b32 s3, s20, 2
s_add_u32 s3, s3, 49152
v_mov_b32 v{T+7}, s3
ds_write_b32 v{T+7}, v{T+6}
v_rcp_f32 v{S[1]}, v{S[1]}""")
        for e in range(16): p(f"v_add_f32 v{S[0]+e}, v{S[0]+e}, v{O[mine]+e}")
        p("s_waitcnt lgkmcnt(0)")
        p("s_barrier")
        p(f"v_mov_b32 v{T+7}, 49152")
        p(f"ds_read_b128 {r(KF[0])}, v{T+7}")
        for e in range(16): p(f"v_mul_f32 v{S[0]+e}, v{S[0]+e}, v{S[1]}")
        for u in range(2):
            for k2, b in enumerate((4 * u, 4 * u + 2, 8 + 4 * u, 8 + 4 * u + 2)):
                p(f"v_cvt_pk_bf16_f32 v{P[0]+4*u+k2}, v{S[0]+b}, v{S[0]+b+1}")
        p(f"""v_or3_b32 v{KF[0]}, v{KF[0]}, v{KF[0]+1}, v{KF[0]+2}
v_or_b32 v{KF[0]}, v{KF[0]}, v{KF[0]+3}
v_readfirstlane_b32 s38, v{KF[0]}
s_andn2_b32 s38, s38, s40
s_cmp_lg_u32 s38, 0
s_cbranch_scc1 {n}_fallback
buffer_store_dwordx4 {r(P[0])}, v{F}, s[4:7], s26 offen sc1
buffer_store_dwordx4 {r(P[0]+4)}, v{F}, s[4:7], s26 offen offset:512 sc1
s_lshl_b32 s3, s22, 1
s_add_u32 s3, s3, s41
s_lshl_b32 s3, s3, 2
s_lshl_b32 s26, s23, 1
s_add_u32 s3, s3, s26
s_add_u32 s3, s3, {mine}
s_lshl_b32 s3, s3, 7
s_add_u32 s3, s3, {FLAG_OFF}
v_mov_b32 v{F+1}, 1
v_mov_b32 v{F+2}, 0
s_mov_b64 exec, 1
s_waitcnt vmcnt(0)
buffer_atomic_add v{F+1}, v{F+2}, s[4:7], s3 offen sc1
s_mov_b64 exec, -1""")
        if TW == 6:
            n2 = (3584 - R2) // 64
            p(f"""s_mul_i32 s3, s56, {n2*128}
s_add_u32 s3, s3, {R2*2048}
s_cmp_eq_u32 s41, 0
s_cselect_b32 s26, {n2}, 0
s_cselect_b32 s27, 16, 0
v_lshlrev_b32 v{T+2}, 7, v{LN_}
v_add_u32 v{T+3}, s3, v{T+2}
s_lshl_b32 s3, s56, 11
v_add_u32 v{T+2}, s3, v{T+2}
v_mov_b32 v{T+4}, 0x40000000
v_cmp_gt_u32 vcc, s26, v{LN_}
v_cndmask_b32 v{T+3}, v{T+4}, v{T+3}, vcc
v_cmp_gt_u32 vcc, s27, v{LN_}
v_cndmask_b32 v{T+2}, v{T+4}, v{T+2}, vcc
buffer_load_dword v{T+5}, v{T+3}, s[48:51], 0 offen
buffer_load_dword v{T+5}, v{T+2}, s[52:55], 0 offen
s_waitcnt vmcnt(0)""")
        stamp(p, 3)
        stamp_out(p, 4, 0, "s20", 2)
        p("s_endpgm")
    fin(0, 1)
    p(f"{n}_h1:")
    fin(1, 0)
    p(f"{n}_fallback:")
    M = NM
    p(f"""s_mov_b32 s40, 1
v_mov_b32 v{M}, 0xff800000
v_mov_b32 v{M+1}, 0xff800000
s_add_u32 s28, s21, 32
s_lshl_b32 s28, s28, 17
s_add_u32 s28, s28, {QKV_OFF}
s_lshl_b32 s3, s24, 16
s_add_u32 s28, s28, s3
s_mov_b32 s33, 32""")
    p(f"{n}_fbloop:")
    p(f"buffer_load_dwordx4 {r(KF[0])}, v{KL}, s[4:7], s28 offen")
    p(f"buffer_load_dwordx4 {r(KF[0]+4)}, v{KL}, s[4:7], s28 offen offset:512")
    p("s_waitcnt vmcnt(0)")
    for b in range(2):
        qk(b, 0, 0); qk(b, 0, 1)
    for b in range(2):
        for e in range(0, 16, 2): p(f"v_max3_f32 v{M+b}, v{M+b}, v{S[b]+e}, v{S[b]+e+1}")
    p(f"""s_add_u32 s28, s28, 2048
s_sub_u32 s33, s33, 1
s_cmp_lg_u32 s33, 0
s_cbranch_scc1 {n}_fbloop""")
    for b in range(2):
        p(f"v_mov_b32 v{T+2}, v{M+b}")
        p(f"v_permlane32_swap_b32 v{M+b}, v{T+2}")
        p(f"v_max_f32 v{M+b}, v{M+b}, v{T+2}")
    p(f"""s_lshl_b32 s3, s20, 9
v_lshlrev_b32 v{T+2}, 3, v{LN_}
v_add_u32 v{T+3}, s3, v{T+2}
s_xor_b32 s3, s3, 1024
v_add_u32 v{T+2}, s3, v{T+2}
s_barrier
ds_write_b64 v{T+3}, v[{M}:{M+1}]
s_waitcnt lgkmcnt(0)
s_barrier
ds_read_b64 v[{T+4}:{T+5}], v{T+2}
v_max_f32 v{M}, v{M}, v{T+4}
v_max_f32 v{M+1}, v{M+1}, v{T+5}
s_barrier""")
    start_dma()
    dma_stage(str(ASTG))
    if not AORD: dma_stage(str(2*ASTG))
    mainloop("f", True)
    p(f"s_branch {n}_merge")

GMAP = int(os.environ.get("GMAP", "0"))
GMAPS = ["""s_and_b32 s24, s2, 1
s_bfe_u32 s21, s2, 0x20001
s_lshl_b32 s21, s21, 2
s_bfe_u32 s3, s2, 0x20003
s_add_u32 s21, s21, s3
s_bfe_u32 s22, s2, 0x30005
s_lshl_b32 s46, s22, 8
s_lshl_b32 s3, s24, 7
s_add_u32 s46, s46, s3""",
"""s_and_b32 s21, s2, 7
s_lshl_b32 s21, s21, 1
s_bfe_u32 s3, s2, 0x10003
s_add_u32 s21, s21, s3
s_bfe_u32 s46, s2, 0x40004
s_lshl_b32 s46, s46, 7""",
"""s_and_b32 s24, s2, 1
s_bfe_u32 s21, s2, 0x20001
s_lshl_b32 s21, s21, 2
s_bfe_u32 s3, s2, 0x20003
s_add_u32 s21, s21, s3
s_bfe_u32 s22, s2, 0x30005
s_lshl_b32 s46, s22, 7
s_lshl_b32 s3, s24, 10
s_add_u32 s46, s46, s3""",
"""s_and_b32 s24, s2, 3
s_bfe_u32 s21, s2, 0x10002
s_lshl_b32 s21, s21, 3
s_bfe_u32 s3, s2, 0x30003
s_add_u32 s21, s21, s3
s_bfe_u32 s22, s2, 0x20006
s_lshl_b32 s46, s22, 7
s_lshl_b32 s3, s24, 9
s_add_u32 s46, s46, s3"""]
def gemm_part(p, n):
    def acc(i, t): return (i * 4 + t) * 4
    XF = 32
    WF = 128
    AR = 144; VA = 148; VW = 150
    T = 152; LN_ = T + 1
    PL = T + 8; VZ = T + 9; VO = T + 10
    NS = 72
    P1 = int(os.environ.get("P1", "51")); P2 = int(os.environ.get("P2", "59"))
    p(f"""s_load_dwordx2 s[38:39], s[0:1], 16
s_load_dwordx2 s[40:41], s[0:1], 0
s_load_dwordx2 s[42:43], s[0:1], 56
{GMAPS[GMAP]}
v_lshrrev_b32 v{T+2}, 4, v{LN_}
v_lshrrev_b32 v{T+3}, 3, v{LN_}
v_bfe_u32 v{T+4}, v{LN_}, 1, 2
v_xor_b32 v{T+4}, v{T+4}, v{T+2}
v_and_b32 v{T+6}, 1, v{LN_}
v_lshl_or_b32 v{T+4}, v{T+4}, 1, v{T+6}
v_lshlrev_b32 v{VW}, 11, v{T+3}
v_lshl_add_u32 v{VW}, v{T+4}, 4, v{VW}
s_lshl_b32 s3, s20, 15
s_add_u32 s3, s3, s46
v_add_u32 v{VW}, s3, v{VW}
v_add_u32 v{VW+1}, 16384, v{VW}
s_mov_b32 s25, 0
s_lshl_b32 s29, s20, 11
s_lshl_b32 s3, s21, 3
s_lshl_b32 s26, s20, 1
s_add_u32 s23, s3, s26
s_mul_i32 s3, s23, {ACT_T}
s_add_u32 s3, s3, {ACT_OFF}
v_lshlrev_b32 v{T+5}, 4, v{LN_}
v_add_u32 v{VA}, s3, v{T+5}
v_add_u32 v{VA+1}, {ACT_T}, v{VA}
s_mov_b32 s26, {32*1024}
v_and_b32 v{VO}, 15, v{LN_}
v_lshlrev_b32 v{VO}, 11, v{VO}
v_lshl_add_u32 v{VO}, v{T+2}, 3, v{VO}
s_lshl_b32 s3, s23, 15
s_add_u32 s3, s3, s46
v_add_u32 v{VO}, s3, v{VO}
v_add_u32 v{VO+1}, 32768, v{VO}
s_waitcnt lgkmcnt(0)""")
    srd(p, 4, "s34", "s35", hex(WS_BYTES))
    srd(p, 8, "s36", "s37", hex(3584 * 2048))
    srd(p, 12, "s40", "s41", hex(4 << 20))
    def ldw(slot, j):
        p(f"s_add_u32 m0, s29, {slot*8192 + j*1024}")
        return f"buffer_load_dwordx4 v{VW+j}, s[8:11], s25 offen lds"
    def ldx(slot, k):
        return f"buffer_load_dwordx4 {r(XF + slot * 16 + k * 4)}, v{VA+(k>>1)}, s[4:7], s26 offen offset:{(k&1)*1024}"
    def advw(): p("s_add_u32 s25, s25, 131072")
    def advx(): p("s_add_u32 s26, s26, 2048")
    XR = XF
    def issue(s):
        for j in range(2): p(ldw(s, j))
        for k in range(4): p(ldx(s, k))
        advw(); advx()
    for s in range(GORD):
        issue(s)
        if s == 0 and not RES:
            for i in range(2):
                for t in range(4): p(f"buffer_load_dwordx2 {r(112+i*8+t*2,2)}, v{VO+i}, s[12:15], 0 offen offset:{t*32}")
    if RES:
        for x in range(32): p(f"v_mov_b32 v{x}, 0")
    p(f"""v_lshlrev_b32 v{T+14}, 3, v{T+2}
v_sub_u32 v{T+14}, v{VO}, v{T+14}
v_and_b32 v{T+15}, 1, v{T+2}
v_lshl_add_u32 v{T+14}, v{T+15}, 5, v{T+14}
v_lshrrev_b32 v{T+15}, 1, v{T+2}
v_lshl_add_u32 v{T+14}, v{T+15}, 4, v{T+14}
v_add_u32 v{T+15}, 32768, v{T+14}""")
    WST = int(os.environ.get("WST", "3"))
    if WST == 3:
        p(f"""s_lshl_b32 s3, s20, 13
v_and_b32 v{T+13}, 15, v{LN_}
v_mul_u32_u24 v{T+13}, 144, v{T+13}
v_lshl_add_u32 v{T+13}, v{T+2}, 3, v{T+13}
v_add_u32 v{T+13}, s3, v{T+13}
v_lshrrev_b32 v{T+15}, 3, v{LN_}
v_and_b32 v{T+14}, 7, v{LN_}
v_lshlrev_b32 v{T+14}, 4, v{T+14}
v_mul_u32_u24 v{T+12}, 144, v{T+15}
v_add3_u32 v{T+12}, v{T+12}, v{T+14}, s3
v_lshl_add_u32 v{T+14}, v{T+15}, 11, v{T+14}
s_lshl_b32 s60, s23, 15
s_add_u32 s60, s60, s46
s_add_u32 s61, s60, 16384
s_add_u32 s62, s60, 32768
s_add_u32 s63, s60, 49152""")
    elif TCH:
        p(f"v_mul_u32_u24 v{T+13}, 112, v{LN_}")
        p(f"v_add_u32 v{T+13}, v{T+13}, v{VA}")
    srd(p, 16, "s42", "s43", hex(4 << 20))
    p(f"""s_lshl_b32 s44, s21, 3
s_add_u32 s44, s44, s20
s_lshl_b32 s44, s44, 7
s_add_u32 s44, s44, {FLAG_OFF}
s_add_u32 s52, s44, 512
v_mov_b32 v{VZ}, 0
v_bfe_u32 v{T+3}, v{LN_}, 2, 2
v_lshl_add_u32 v{T+3}, v{T+2}, 2, v{T+3}
v_bfe_u32 v{T+4}, v{T+3}, 1, 2
v_and_b32 v{T+6}, 3, v{LN_}
v_lshlrev_b32 v{T+3}, 7, v{T+3}
v_lshl_add_u32 v{T+3}, v{T+6}, 3, v{T+3}""")
    for t in range(4):
        p(f"v_xor_b32 v{T+6}, {t}, v{T+4}")
        p(f"v_lshl_add_u32 v{AR+t}, v{T+6}, 5, v{T+3}")
    NB = int(os.environ.get("NB", "4"))
    def wb(s, t):
        k = (s * 8 + t) % NB
        return WF + k * 4 if k < 4 else T + (k - 4) * 4
    def rdw(s, t):
        slot = s % 6
        b = wb(s, t); off = slot * 8192 + (t >> 2) * 4096
        p(f"ds_read_b64_tr_b16 {r(b,2)}, v{AR+(t&3)} offset:{off}")
        p(f"ds_read_b64_tr_b16 {r(b+2,2)}, v{AR+(t&3)} offset:{off+2048}")
    p(f"s_waitcnt vmcnt({6*(GORD-1)})")
    p("s_barrier")
    for t in range(NB - 1): rdw(0, t)
    for s in range(GORD, 5): issue(s)
    if not RES:
        for x in range(16):
            p(f"v_lshlrev_b32 v{2*x}, 16, v{112+x}")
            p(f"v_and_b32 v{2*x+1}, 0xffff0000, v{112+x}")
    stamp(p, 1)
    def spin(tag, addr, val):
        p(f"""v_readfirstlane_b32 s3, v{PL}
s_cmp_ge_u32 s3, {val}
s_cbranch_scc1 {n}_{tag}_ok
{n}_{tag}_spin:
s_sleep 1
buffer_load_dword v{PL}, v{VZ}, s[4:7], {addr} offen sc1
s_waitcnt vmcnt(0)
v_readfirstlane_b32 s3, v{PL}
s_cmp_lt_u32 s3, {val}
s_cbranch_scc1 {n}_{tag}_spin
{n}_{tag}_ok:""")
    def step(s, q, vm):
        last = s == NS - 1
        p(f"s_waitcnt vmcnt({vm})")
        if not last: p("s_barrier")
        q = list(q)
        for t in range(8):
            b = wb(s, t)
            for i in range(2):
                pend = None
                if q and (i == 0 or len(q) > 7 - t):
                    kind, sl, idx = q.pop(0)
                    pend = ldw(sl, idx) if kind == "w" else (ldx(sl, idx) if kind == "x" else idx)
                    if kind == "x" and idx == 3: pend += "\ns_add_u32 s26, s26, 2048"
                    if kind == "w" and idx == 1: pend += "\ns_add_u32 s25, s25, 131072"
                a = acc(i, t & 3); xb = XF + (s % 6) * 16 + i * 8 + (t >> 2) * 4
                p(f"v_mfma_f32_16x16x32_bf16 {r(a)}, {r(b)}, {r(xb)}, {r(a)}")
                if pend: p(pend)
                if i == 1:
                    if t + NB - 1 < 8: rdw(s, t + NB - 1)
                    elif not last: rdw(s + 1, t + NB - 1 - 8)
        assert not q
    def QW(L): return [("w", L % 6, j) for j in range(2)]
    def QX(L): return [("x", L % 6, k) for k in range(4)]
    p("s_mov_b32 s30, 8")
    p(f"s_setprio {GPRIO}")
    p(f"{n}_gloop:")
    if GSCHED:
        for k, it in enumerate(GSCHED.split(",")):
            pr, rem = it.split(":")
            p(f"""s_cmp_lg_u32 s30, {rem}
s_cbranch_scc1 {n}_gp{k}
s_setprio {pr}
{n}_gp{k}:""")
    if FINE == 1:
        for k, rem in ((2, 8), (3, 6), (4, 4), (5, 2)):
            p(f"s_cmp_lg_u32 s30, {rem}\ns_cbranch_scc1 {n}_fs{k}")
            stamp(p, k)
            p(f"{n}_fs{k}:")
    for s in range(6): step(s, QW(s + 5) + QX(s + 5), 22)
    p(f"""s_sub_u32 s30, s30, 1
s_cmp_lg_u32 s30, 0
s_cbranch_scc1 {n}_gloop""")
    hist = []
    for L in range(48, 53): hist += [("w", L)] * 2 + [("x", L)] * 4
    def vmfor(tags):
        last = max(i for i, h in enumerate(hist) if h in tags)
        return len(hist) - 1 - last
    nx = 53
    for s in range(48, NS):
        L = s + 5
        if L == 56:
            p(f"""s_mov_b32 s8, s38
s_and_b32 s9, s39, 0xffff
s_mov_b32 s10, {1024*2048}
s_mov_b32 s25, 0""")
        for k, (ps, addr) in enumerate(((P1, "s44"), (P2, "s52"))):
            if s == ps:
                if not FINE: stamp(p, 2 + 2 * k)
                elif k == 0 and FINE == 1: stamp(p, 6)
                p(f"s_waitcnt vmcnt({vmfor([('poll', k)])})")
                spin("o%d" % k, addr, 16)
                if k == 0: p("s_mov_b32 s26, 0")
                if k == 1: p("s_setprio 3")
                if not FINE: stamp(p, 3 + 2 * k)
                if FINE == 2 and k == 1: stamp(p, 2)
        lim = min(L, NS - 1, 55 if s < P1 else (63 if s < P2 else NS))
        pre = []
        while nx <= lim - 1 and nx <= lim:
            pre.append(nx); nx += 1
        for x in pre:
            for k in range(4): p(ldx(x % 6, k))
            advx(); hist.extend([("x", x)] * 4)
        need = [("x", s)] + ([("w", s + 1)] if s + 1 < NS else [])
        vm = vmfor(need)
        q = []
        if L < NS: q += QW(L); hist += [("w", L)] * 2
        if nx <= lim: q += QX(nx); hist += [("x", nx)] * 4; nx += 1
        for k, (ps, addr) in enumerate(((P1, "s44"), (P2, "s52"))):
            if s == ps - 2:
                q.append(("i", 0, f"buffer_load_dword v{PL}, v{VZ}, s[4:7], {addr} offen sc1")); hist.append(("poll", k))
        for k, ps in enumerate((P1, P2)):
            if s == ps and (TCH >> k) & 1:
                for o_ in (8192, ACT_T + 8192, 0, ACT_T):
                    q.append(("i", 0, f"s_mov_b32 s60, {k*16384 + o_}\nbuffer_load_dword v{T+12}, v{T+13}, s[4:7], s60 offen")); hist.append(("t", 1))
        if s == 49 and RES:
            q.append(("i", 0, f"buffer_load_dword v{T+12}, v{VO}, s[12:15], 0 offen")); hist.append(("t", 0))
            q.append(("i", 0, f"buffer_load_dword v{T+12}, v{VO+1}, s[12:15], 0 offen")); hist.append(("t", 0))
        if s == 67 and RES:
            for i in range(2):
                for t in range(4):
                    q.append(("i", 0, f"buffer_load_dwordx2 {r(XR+i*8+t*2,2)}, v{VO+i}, s[12:15], 0 offen offset:{t*32}")); hist.append(("r", 0))
        if s == 71 and RES:
            need.append(("r", 0)); vm = vmfor(need)
            for i in range(2):
                for t in range(4):
                    xr = XR + i * 8 + t * 2; tq = XF + 16 + acc(i, t)
                    q.append(("i", 0, f"""v_lshlrev_b32 v{tq}, 16, v{xr}
v_and_b32 v{tq+1}, 0xffff0000, v{xr}
v_lshlrev_b32 v{tq+2}, 16, v{xr+1}
v_and_b32 v{tq+3}, 0xffff0000, v{xr+1}"""))
        if FINE == 2 and s in FS:
            p(f"s_waitcnt vmcnt({vm})"); stamp(p, 3 + FS.index(s))
        step(s, q, vm)
    if FINE == 2: stamp(p, 5)
    WST = int(os.environ.get("WST", "3"))
    for i in range(2):
        for t in range(4):
            a = acc(i, t); xr = XF + i * 8 + t * 2; tq = XF + 16 + a
            if RES: p(f"""v_pk_add_f32 {r(a,2)}, {r(a,2)}, {r(tq,2)}
v_pk_add_f32 {r(a+2,2)}, {r(a+2,2)}, {r(tq+2,2)}""")
            p(f"""v_cvt_pk_bf16_f32 v{xr}, v{a}, v{a+1}
v_cvt_pk_bf16_f32 v{xr+1}, v{a+2}, v{a+3}""")
            if not WST: p(f"buffer_store_dwordx2 {r(xr,2)}, v{VO+i}, s[16:19], 0 offen offset:{t*32}{STO}")
            elif WST == 3: p(f"ds_write_b64 v{T+13}, {r(xr,2)} offset:{i*2304 + t*32}")
            elif t & 1:
                p(f"""v_permlane16_swap_b32 v{xr-2}, v{xr}
v_permlane16_swap_b32 v{xr-1}, v{xr+1}
buffer_store_dwordx4 {r(xr-2,4)}, v{T+14+i}, s[16:19], 0 offen offset:{(t-1)*32}{STO}""")
    if WST == 3:
        for k in range(4): p(f"ds_read_b128 {r(XF+16+4*k)}, v{T+12} offset:{k*1152}")
        for k in range(4): p(f"buffer_store_dwordx4 {r(XF+16+4*k)}, v{T+14}, s[16:19], s{60+k} offen{STO}")
    if FINE == 2: p("s_waitcnt vmcnt(0)")
    if FINE != 1: stamp(p, 6)
    stamp_out(p, 7, 0, "s20", 2)
    p("s_endpgm")

def gen_k2():
    p = Prog(); n = "k2_kernel"; header(p, n)
    p(f"""s_setprio 3
s_load_dwordx2 s[34:35], s[0:1], 72
s_load_dwordx2 s[36:37], s[0:1], 48
s_cmp_ge_u32 s2, 768
s_cbranch_scc1 {n}_end""")
    stamp(p, 0)
    p(f"""v_lshrrev_b32 v152, 6, v0
v_and_b32 v153, 63, v0
v_readfirstlane_b32 s20, v152
s_lshr_b32 s3, s2, 8
s_cmp_eq_u32 s3, {GROLE}
s_cbranch_scc1 {n}_gemm""")
    if os.environ.get("ONLY") == "g": p("s_endpgm")
    attn_part(p, n)
    p(f"{n}_gemm:")
    if os.environ.get("ONLY") == "a": p("s_endpgm")
    gemm_part(p, n)
    p(f"{n}_end:")
    p("s_endpgm")
    return p.finalize() + descriptor(n, 168, 168), f"; @launch kernel={n} grid=(768,1,1) block=(256,1,1) lds={K2_LDS}"

def parts():
    r_ = [gen_k2()]
    return r_
```

```python
import sys, struct
sys.path.insert(0, "dev")
from asmlib import Prog

NAME = "parallel_sum__mha_block__glu_gated_swiglu__prompt"
XN_OFF = 0
QKV_OFF = 4 << 20
ACT_OFF = 16 << 20
ACT_T = 144 * 1024
WS_BYTES = 268435456
PART_OFF = 40 << 20
FLAG_OFF = 60 << 20
LOG2E = 1.4426950408889634
def f2u(f): return struct.unpack("<I", struct.pack("<f", f))[0]
def hx(f): return "0x%08x" % f2u(f)

def header(p, name):
    p(f""".text
.globl {name}
.p2align 8
.type {name},@function
{name}:""")

def descriptor(name, nvgpr, accum):
    return f""".section .rodata,"a"
.p2align 6
.amdhsa_kernel {name}
  .amdhsa_next_free_vgpr {nvgpr}
  .amdhsa_next_free_sgpr 102
  .amdhsa_accum_offset {accum}
  .amdhsa_group_segment_fixed_size 0
  .amdhsa_kernarg_size 80
  .amdhsa_user_sgpr_count 2
  .amdhsa_user_sgpr_kernarg_segment_ptr 1
  .amdhsa_system_sgpr_workgroup_id_x 1
.end_amdhsa_kernel
"""

def srd(p, s, lo, hi, nrec):
    p(f"s_mov_b32 s{s}, {lo}")
    p(f"s_and_b32 s{s+1}, {hi}, 0xffff")
    p(f"s_mov_b32 s{s+2}, {nrec}")
    p(f"s_mov_b32 s{s+3}, 0x00020000")

import os
DBG = int(os.environ.get("DBG", "0"))
PRO = int(os.environ.get("PRO", "0"))
STM = os.environ.get("STM", "")
STL = os.environ.get("STL", "")
STO = os.environ.get("STO", "")
def stamp(p, k):
    if DBG:
        p(f"s_memtime s[{80+2*k}:{81+2*k}]")
        if k == 0: p("s_memrealtime s[96:97]")
        p("s_waitcnt lgkmcnt(0)")
def stamp_out(p, nst, vt, wavesgpr, kidx=0):
    if not DBG: return
    p(f"""s_memrealtime s[98:99]
s_load_dwordx2 s[4:5], s[0:1], 72
s_getreg_b32 s6, hwreg(HW_REG_HW_ID)
s_getreg_b32 s7, hwreg(HW_REG_XCC_ID)
s_waitcnt lgkmcnt(0)""")
    srd(p, 8, "s4", "s5", hex(WS_BYTES))
    for k in range(1, nst): p(f"s_sub_u32 s{80+2*k}, s{80+2*k}, s80")
    p("s_and_b32 s6, s6, 0xffff")
    p("s_lshl_b32 s7, s7, 16")
    p("s_or_b32 s6, s6, s7")
    p(f"v_mov_b32 v{vt}, s96")
    p(f"v_mov_b32 v{vt+1}, s98")
    p(f"v_mov_b32 v{vt+2}, s6")
    ks = list(range(1, nst))[-5:]
    for i in range(5):
        p(f"v_mov_b32 v{vt+3+i}, " + (f"s{80+2*ks[i]}" if i < len(ks) else "0"))
    p(f"""s_lshl_b32 s3, s2, 5
s_add_u32 s3, s3, {(192<<20) + kidx*65536}
s_cmp_eq_u32 {wavesgpr}, 0
s_cselect_b32 s3, s3, {WS_BYTES}
v_mov_b32 v{vt+8}, 0
s_nop 3
buffer_store_dwordx4 v[{vt}:{vt+3}], v{vt+8}, s[8:11], s3 offen
buffer_store_dwordx4 v[{vt+4}:{vt+7}], v{vt+8}, s[8:11], s3 offen offset:16""")

def gen_ln():
    p = Prog(); n = "ln_kernel"; header(p, n)
    p(f"""s_cmp_ge_u32 s2, 256
s_cbranch_scc1 {n}_end
s_load_dwordx2 s[4:5], s[0:1], 0
s_load_dwordx2 s[6:7], s[0:1], 72
s_load_dwordx2 s[20:21], s[0:1], 48
s_load_dwordx2 s[24:25], s[0:1], 16
v_and_b32 v1, 63, v0
v_lshrrev_b32 v2, 6, v0
v_and_b32 v3, 7, v1
v_lshrrev_b32 v4, 3, v1
s_waitcnt lgkmcnt(0)""")
    srd(p, 8, "s4", "s5", hex(2048 * 1024 * 2))
    srd(p, 12, "s6", "s7", hex(WS_BYTES))
    p(f"""s_lshl_b32 s3, s2, 14
v_lshlrev_b32 v5, 11, v3
v_lshl_add_u32 v5, v2, 9, v5
v_lshl_add_u32 v5, v4, 4, v5""")
    for i in range(4):
        p(f"buffer_load_dwordx4 v[{8+4*i}:{11+4*i}], v5, s[8:11], s3 offen offset:{128*i}")
    p(f"""v_and_b32 v6, 3, v4
v_lshrrev_b32 v7, 2, v4
v_lshlrev_b32 v60, 13, v2
v_lshl_add_u32 v60, v7, 10, v60
v_lshl_add_u32 v60, v6, 8, v60
v_lshl_add_u32 v60, v3, 4, v60
s_lshr_b32 s16, s2, 1
s_lshl_b32 s16, s16, 15
s_and_b32 s17, s2, 1
s_lshl_b32 s17, s17, 7
s_add_u32 s16, s16, s17
v_lshlrev_b32 v61, 4, v3
v_lshl_add_u32 v62, v2, 2, v61
v_lshlrev_b32 v68, 2, v0
v_mov_b32 v69, 0
s_lshl_b32 s18, s2, 10
s_add_u32 s18, s18, {FLAG_OFF}
buffer_store_dword v69, v68, s[12:15], s18 offen""")
    NR = int(os.environ.get("NR", "0"))
    if NR:
        p("v_lshlrev_b32 v70, 7, v0")
        p("s_lshl_b32 s19, s2, 15")
        for k, (lo, pitch) in enumerate(((20, 6144), (24, 7168), (26, 7168))):
            srd(p, 28, f"s{lo}", f"s{lo+1}", hex(NR * pitch))
            p("v_add_u32 v70, s19, v70" if k == 0 else "s_nop 0")
            p("buffer_load_dword v71, v70, s[28:31], 0 offen")
    TW = int(os.environ.get("TW", "1"))
    if TW == 5:
        srd(p, 28, "s20", "s21", hex(3584 * 2048))
        srd(p, 32, "s24", "s25", hex(1024 * 2048))
        p(f"""v_lshlrev_b32 v70, 7, v0
s_mul_i32 s19, s2, 28672
v_mov_b32 v71, 0x40000000
v_cmp_gt_u32 vcc, 224, v0
v_cndmask_b32 v64, v71, v70, vcc
v_cmp_gt_u32 vcc, 64, v0
v_cndmask_b32 v65, v71, v70, vcc
v_add_u32 v64, s19, v64
s_lshl_b32 s19, s2, 13
v_add_u32 v65, s19, v65
buffer_load_dword v71, v64, s[28:31], 0 offen
buffer_load_dword v71, v65, s[32:35], 0 offen""")
    p(f"s_waitcnt vmcnt({4 if NR else (3 if TW == 5 else 1)})")
    for i in range(16):
        p(f"v_lshlrev_b32 v{24+2*i}, 16, v{8+i}")
        p(f"v_and_b32 v{25+2*i}, 0xffff0000, v{8+i}")
    def reduce(dst, ldsoff):
        p(f"""v_add_f32_dpp v{dst}, v{dst}, v{dst} row_ror:8 row_mask:0xf bank_mask:0xf
v_mov_b32 v63, v{dst}
v_permlane16_swap_b32 v{dst}, v63
v_add_f32 v{dst}, v{dst}, v63
v_mov_b32 v63, v{dst}
v_permlane32_swap_b32 v{dst}, v63
v_add_f32 v{dst}, v{dst}, v63
ds_write_b32 v62, v{dst} offset:{ldsoff}
s_waitcnt lgkmcnt(0)
s_barrier
ds_read_b128 v[64:67], v61 offset:{ldsoff}
v_add_f32 v64, v64, v65
v_add_f32 v66, v66, v67
v_add_f32 v{dst}, v64, v66""")
    p("v_pk_add_f32 v[56:57], v[24:25], v[26:27]")
    for i in range(2, 16):
        p(f"v_pk_add_f32 v[56:57], v[56:57], v[{24+2*i}:{25+2*i}]")
    p("v_add_f32 v56, v56, v57")
    reduce(56, 0)
    p(f"v_mul_f32 v56, {hx(1.0/1024)}, v56")
    p("v_mov_b32 v58, 0")
    p("v_mov_b32 v59, 0")
    for i in range(32):
        p(f"v_sub_f32 v{8+(i&7)}, v{24+i}, v56")
        p(f"v_fmac_f32 v{58+(i&1)}, v{8+(i&7)}, v{8+(i&7)}")
    p("v_add_f32 v58, v58, v59")
    reduce(58, 128)
    p(f"""v_mul_f32 v58, {hx(1.0/1024)}, v58
v_cvt_pk_bf16_f32 v57, v56, v58
v_lshlrev_b32 v56, 16, v57
v_and_b32 v58, 0xffff0000, v57
v_add_f32 v58, {hx(1e-5)}, v58
v_cvt_pk_bf16_f32 v58, v58, v58
v_and_b32 v58, 0xffff0000, v58
v_sqrt_f32 v58, v58
v_cvt_pk_bf16_f32 v58, v58, v58
v_and_b32 v58, 0xffff0000, v58
v_rcp_f32 v58, v58""")
    for i in range(16):
        a, b = 24 + 2 * i, 25 + 2 * i
        p(f"""v_sub_f32 v{a}, v{a}, v56
v_sub_f32 v{b}, v{b}, v56
v_cvt_pk_bf16_f32 v{8+i}, v{a}, v{b}
v_lshlrev_b32 v{a}, 16, v{8+i}
v_and_b32 v{b}, 0xffff0000, v{8+i}
v_mul_f32 v{a}, v{a}, v58
v_mul_f32 v{b}, v{b}, v58
v_cvt_pk_bf16_f32 v{8+i}, v{a}, v{b}""")
    for i in range(4):
        p(f"buffer_store_dwordx4 v[{8+4*i}:{11+4*i}], v60, s[12:15], s16 offen offset:{2048*(i&1)}{STL}")
        if i == 1: p("s_add_u32 s16, s16, 4096")
    p(f"{n}_end:")
    p("s_endpgm")
    return p.finalize() + descriptor(n, 72, 72), f"; @launch kernel={n} grid=(256,1,1) block=(256,1,1) lds=256"

def gen_ln2():
    p = Prog(); n = "ln_kernel"; header(p, n)
    p(f"""s_load_dwordx2 s[4:5], s[0:1], 0
s_load_dwordx2 s[6:7], s[0:1], 72
s_cmp_ge_u32 s2, 256
s_cbranch_scc1 {n}_end
v_and_b32 v1, 63, v0
v_lshrrev_b32 v2, 6, v0
v_and_b32 v3, 7, v1
v_lshrrev_b32 v4, 3, v1
s_lshl_b32 s3, s2, 14
v_lshlrev_b32 v5, 11, v3
v_lshl_add_u32 v5, v2, 8, v5
v_lshl_add_u32 v5, v4, 4, v5
s_mov_b32 s10, {hex(2048 * 1024 * 2)}
s_mov_b32 s11, 0x00020000
s_waitcnt lgkmcnt(0)
s_mov_b32 s8, s4
s_and_b32 s9, s5, 0xffff""")
    for i in range(2):
        p(f"buffer_load_dwordx4 v[{8+4*i}:{11+4*i}], v5, s[8:11], s3 offen offset:{128*i}")
    srd(p, 12, "s6", "s7", hex(WS_BYTES))
    p(f"""v_and_b32 v6, 3, v4
v_lshrrev_b32 v7, 2, v4
v_lshlrev_b32 v60, 12, v2
v_lshl_add_u32 v60, v7, 10, v60
v_lshl_add_u32 v60, v6, 8, v60
v_lshl_add_u32 v60, v3, 4, v60
s_lshr_b32 s16, s2, 1
s_lshl_b32 s16, s16, 15
s_and_b32 s17, s2, 1
s_lshl_b32 s17, s17, 7
s_add_u32 s16, s16, s17
v_lshlrev_b32 v61, 5, v3
v_lshl_add_u32 v62, v2, 2, v61""")
    for i in range(8):
        if i % 4 == 0: p(f"s_waitcnt vmcnt({1 - i // 4})")
        p(f"v_lshlrev_b32 v{24+2*i}, 16, v{8+i}")
        p(f"v_and_b32 v{25+2*i}, 0xffff0000, v{8+i}")
    def reduce(dst, ldsoff):
        p(f"""v_add_f32_dpp v{dst}, v{dst}, v{dst} row_ror:8 row_mask:0xf bank_mask:0xf
v_mov_b32 v63, v{dst}
v_permlane16_swap_b32 v{dst}, v63
v_add_f32 v{dst}, v{dst}, v63
v_mov_b32 v63, v{dst}
v_permlane32_swap_b32 v{dst}, v63
v_add_f32 v{dst}, v{dst}, v63
ds_write_b32 v62, v{dst} offset:{ldsoff}
s_waitcnt lgkmcnt(0)
s_barrier
ds_read_b128 v[64:67], v61 offset:{ldsoff}
ds_read_b128 v[68:71], v61 offset:{ldsoff+16}
v_pk_add_f32 v[64:65], v[64:65], v[66:67]
v_pk_add_f32 v[68:69], v[68:69], v[70:71]
v_pk_add_f32 v[64:65], v[64:65], v[68:69]
v_add_f32 v{dst}, v64, v65""")
    def pr(b): return f"v[{b}:{b+1}]"
    for k in range(4): p(f"v_pk_add_f32 {pr(40+2*k)}, {pr(24+4*k)}, {pr(26+4*k)}")
    p(f"""v_pk_add_f32 {pr(40)}, {pr(40)}, {pr(42)}
v_pk_add_f32 {pr(44)}, {pr(44)}, {pr(46)}
v_pk_add_f32 {pr(40)}, {pr(40)}, {pr(44)}
v_add_f32 v56, v40, v41""")
    reduce(56, 0)
    p(f"v_mul_f32 v56, {hx(1.0/1024)}, v56")
    SUB = "op_sel_hi:[1,0] neg_lo:[0,1] neg_hi:[0,1]"
    for k in range(8): p(f"v_pk_add_f32 {pr(40+2*k)}, {pr(24+2*k)}, v[56:57] {SUB}")
    for k in range(2): p(f"v_pk_mul_f32 {pr(8+2*k)}, {pr(40+2*k)}, {pr(40+2*k)}")
    for k in range(2, 8): p(f"v_pk_fma_f32 {pr(8+2*(k&1))}, {pr(40+2*k)}, {pr(40+2*k)}, {pr(8+2*(k&1))}")
    p(f"""v_pk_add_f32 {pr(8)}, {pr(8)}, {pr(10)}
v_add_f32 v58, v8, v9
v_cvt_pk_bf16_f32 v57, v56, v56
v_and_b32 v56, 0xffff0000, v57""")
    for k in range(8): p(f"v_pk_add_f32 {pr(24+2*k)}, {pr(24+2*k)}, v[56:57] {SUB}")
    reduce(58, 256)
    p(f"""v_mul_f32 v58, {hx(1.0/1024)}, v58
v_cvt_pk_bf16_f32 v58, v58, v58
v_and_b32 v58, 0xffff0000, v58
v_add_f32 v58, {hx(1e-5)}, v58
v_cvt_pk_bf16_f32 v58, v58, v58
v_and_b32 v58, 0xffff0000, v58
v_sqrt_f32 v58, v58
v_cvt_pk_bf16_f32 v58, v58, v58
v_and_b32 v58, 0xffff0000, v58
v_rcp_f32 v58, v58""")
    for k in range(8): p(f"v_pk_mul_f32 {pr(24+2*k)}, {pr(24+2*k)}, v[58:59] op_sel_hi:[1,0]\nv_cvt_pk_bf16_f32 v{8+k}, v{24+2*k}, v{25+2*k}" + (f"\nbuffer_store_dwordx4 v[{5+k}:{8+k}], v60, s[12:15], s16 offen offset:{2048*(k>>2)}{STL}" if k % 4 == 3 else ""))
    p(f"{n}_end:")
    p("s_endpgm")
    txt = p.finalize()
    rt = "".join(f"    v_cvt_pk_bf16_f32 v{8+k}, v{24+2*k}, v{25+2*k}\n" for k in range(8)) + "".join(f"    v_lshlrev_b32 v{24+2*k}, 16, v{8+k}\n    v_and_b32 v{25+2*k}, 0xffff0000, v{8+k}\n" for k in range(8))
    key = "    ds_write_b32 v62, v58 offset:256\n"
    assert txt.count(key) == 1
    txt = txt.replace(key, key + rt)
    return txt + descriptor(n, 72, 72), f"; @launch kernel={n} grid=(256,1,1) block=(512,1,1) lds=512"

STG = 36864
def gen_g1():
    p = Prog(); n = "g1_kernel"; header(p, n)
    def acc(i, j):
        if i < 5: b = (i * 10 + j) * 4; return f"v[{b}:{b+3}]"
        b = ((i - 5) * 10 + j) * 4; return f"a[{b}:{b+3}]"
    def xf(buf, i): b = 120 + buf * 32 + i * 4; return f"a[{b}:{b+3}]"
    def wf(j): return 184 + (j % 5) * 4
    VX, VP, VS, AX, AP, AS = 200, 204, 208, 209, 211, 219
    p(f"""s_cmp_ge_u32 s2, 256
s_cbranch_scc1 {n}_end""")
    stamp(p, 0)
    p(f"""s_load_dwordx2 s[32:33], s[0:1], 8
s_load_dwordx4 s[36:39], s[0:1], 32
s_load_dwordx2 s[34:35], s[0:1], 72
s_load_dwordx2 s[66:67], s[0:1], 48
s_load_dwordx2 s[68:69], s[0:1], 16
s_load_dwordx2 s[76:77], s[0:1], 0
v_lshrrev_b32 v221, 6, v0
v_and_b32 v222, 63, v0
v_readfirstlane_b32 s20, v221
s_lshr_b32 s22, s2, 5""")
    CM = int(os.environ.get("CM", "0"))
    if CM == 0: p("""s_and_b32 s21, s2, 7
s_lshl_b32 s21, s21, 2
s_lshr_b32 s3, s2, 3
s_and_b32 s3, s3, 3
s_add_u32 s21, s21, s3""")
    elif CM == 1: p("s_and_b32 s21, s2, 31")
    else: p("""s_and_b32 s40, s2, 7
s_bfe_u32 s3, s2, 0x20003
s_lshl_b32 s21, s40, 1
s_add_u32 s21, s21, s3
s_add_u32 s21, s21, 9
s_cmp_eq_u32 s3, 0
s_cselect_b32 s21, s40, s21
s_cmp_lt_u32 s40, 2
s_cselect_b32 s41, 8, 24
s_add_u32 s41, s41, s40
s_cmp_eq_u32 s3, 3
s_cselect_b32 s21, s41, s21""")
    p("""s_mul_i32 s40, s21, 10
s_cmp_eq_u32 s21, 9
s_cselect_b32 s41, 1, 0
s_cmp_ge_u32 s21, 10
s_cselect_b32 s42, 1, 0
s_sub_u32 s45, s21, 10
s_lshr_b32 s46, s45, 1
s_mul_i32 s46, s46, 10
s_and_b32 s45, s45, 1
s_lshl_b32 s43, s45, 2
s_add_u32 s43, s43, s46
s_add_u32 s44, s46, 8
s_add_u32 s44, s44, s45""")
    def pair_info(hi, side, d_gu, d_blk):
        p(f"""s_or_b32 s47, s41, s42
s_cmp_lg_u32 {hi}, 0
s_cselect_b32 {d_gu}, s47, s42""")
        p(f"""s_cmp_lg_u32 s41, 0
s_cselect_b32 s47, 2, 4
s_mul_i32 s47, s47, {side}
s_lshl_b32 s48, {hi}, 1
s_add_u32 s47, s47, s48
s_add_u32 s47, s47, s40""")
        p(f"""s_add_u32 s48, s48, s43
s_cmp_lg_u32 s41, 0
s_cselect_b32 s48, 110, s48
s_cmp_lg_u32 {d_gu}, 0
s_cselect_b32 {d_blk}, s48, s47""")
    def single_info(side, d_gu, d_blk):
        p(f"""s_mov_b32 {d_gu}, s42
s_cmp_lg_u32 s41, 0
s_cselect_b32 s47, 4, 8
s_add_u32 s47, s47, s40
s_add_u32 s47, s47, {side}
s_cmp_lg_u32 s42, 0
s_cselect_b32 {d_blk}, s44, s47""")
    p("""s_and_b32 s50, s20, 1
s_lshr_b32 s51, s20, 1""")
    pair_info("s50", "s51", "s52", "s53")
    single_info("s51", "s54", "s55")
    p("s_waitcnt lgkmcnt(0)")
    if PRO: stamp(p, 2)
    def wsrd(s, gu, blk, pitch):
        p(f"""s_cmp_lg_u32 s51, 0
s_cselect_b32 s47, s38, s36
s_cselect_b32 s48, s39, s37
s_cmp_lg_u32 {gu}, 0
s_cselect_b32 s47, s47, s32
s_cselect_b32 s48, s48, s33
s_cselect_b32 {pitch}, 7, 6
s_lshl_b32 {pitch}, {pitch}, 10
s_lshl_b32 s49, {blk}, 6
s_add_u32 s{s}, s47, s49
s_addc_u32 s{s+1}, s48, 0
s_and_b32 s{s+1}, s{s+1}, 0xffff
s_lshl_b32 s{s+2}, {pitch}, 10
s_sub_u32 s{s+2}, s{s+2}, s49
s_mov_b32 s{s+3}, 0x00020000""")
    wsrd(8, "s52", "s53", "s56")
    wsrd(12, "s54", "s55", "s57")
    XRM = int(os.environ.get("XRM", "0")); DV = int(os.environ.get("DV", "0"))
    if XRM: srd(p, 4, "s76", "s77", hex(4 << 20))
    else: srd(p, 4, "s34", "s35", hex(4 << 20))
    srd(p, 16, "s34", "s35", hex(WS_BYTES))
    p("""s_lshl_b32 s26, s56, 5
s_lshl_b32 s27, s57, 5
s_mov_b32 s23, 0
s_mov_b32 s24, 0
s_mov_b32 s25, 0
s_lshl_b32 s29, s20, 12
s_lshl_b32 s31, s20, 10""")
    p(f"""s_lshl_b32 s3, s22, 4
s_lshl_b32 s47, s20, 2
s_add_u32 s3, s3, s47
s_lshl_b32 s3, s3, 15
v_lshlrev_b32 v223, 4, v222
v_add_u32 v{VX}, s3, v223""")
    if XRM:
        p(f"""v_lshrrev_b32 v224, 2, v222
v_lshrrev_b32 v225, 4, v222
v_xor_b32 v225, v225, v222
v_and_b32 v225, 3, v225
v_lshlrev_b32 v224, 11, v224
v_lshl_add_u32 v224, v225, 4, v224
v_add_u32 v{VX}, s3, v224""")
    for j in range(1, 4): p(f"v_add_u32 v{VX+j}, {32768*j}, v{VX}")
    p(f"""v_lshrrev_b32 v224, 3, v222
v_and_b32 v225, 7, v222
v_lshrrev_b32 v226, 1, v225
v_bfe_u32 v227, v224, 1, 1
v_xor_b32 v226, v226, v227
v_and_b32 v225, 1, v225
v_mul_lo_u32 v228, v224, s56
s_lshl_b32 s47, s56, 3""")
    for o in range(4):
        p(f"""v_xor_b32 v229, {2*(o&1)}, v226
v_lshl_or_b32 v229, v229, 1, v225
v_lshl_add_u32 v{VP+o}, v229, 4, v228""")
        if o < 3: p("v_add_u32 v228, s47, v228")
    p(f"""v_lshrrev_b32 v224, 2, v222
s_lshl_b32 s47, s50, 4
v_add_u32 v224, s47, v224
v_mul_lo_u32 v228, v224, s57
v_and_b32 v225, 3, v222
v_lshrrev_b32 v226, 5, v222
v_lshlrev_b32 v226, 1, v226
v_xor_b32 v225, v225, v226
v_lshl_add_u32 v{VS}, v225, 4, v228""")
    def dma(slot, idx):
        if idx < 4:
            p(f"s_add_u32 m0, s29, {slot*STG + idx*1024}")
            p(f"buffer_load_dwordx4 v{VX+idx}, s[4:7], s23 offen lds")
        elif idx < 8:
            p(f"s_add_u32 m0, s29, {slot*STG + 16384 + (idx-4)*1024}")
            p(f"buffer_load_dwordx4 v{VP+idx-4}, s[8:11], s24 offen lds")
        else:
            p(f"s_add_u32 m0, s31, {slot*STG + 32768}")
            p(f"buffer_load_dwordx4 v{VS}, s[12:15], s25 offen lds")
    def adv():
        p(f"""s_add_u32 s23, s23, {64 if XRM else 1024}
s_add_u32 s24, s24, s26
s_add_u32 s25, s25, s27""")
    DORD = [4, 5, 6, 7, 8, 0, 1, 2, 3]
    if PRO: stamp(p, 3)
    PEEL = int(os.environ.get("PEEL", "0")); D1 = int(os.environ.get("D1", "0")); MB = int(os.environ.get("MB", "5")); PREI = int(os.environ.get("PREI", "2"))
    for idx in DORD: dma(0, idx)
    adv()
    if PEEL and D1 == 0:
        for idx in DORD: dma(1, idx)
        adv()
    if PRO: stamp(p, 4)
    srd(p, 72, "s66", "s67", hex(3584 * 2048))
    p(f"""s_and_b32 s69, s69, 0xffff
s_lshl_b32 s3, s2, 2
s_add_u32 s3, s3, s20
s_mul_i32 s3, s3, 1280
v_lshlrev_b32 v232, 7, v222
v_add_u32 v232, s3, v232
v_mov_b32 v233, 0x40000000
v_cmp_gt_u32 vcc, 10, v222
v_cndmask_b32 v232, v233, v232, vcc""")
    TW = int(os.environ.get("TW", "1"))
    if TW in (2, 3, 4):
        srd(p, 92, "s68", "s69", hex(1024 * 2048))
        p(f"""s_lshl_b32 s3, s2, 2
s_add_u32 s3, s3, s20
s_mul_i32 s47, s3, 7168
v_lshlrev_b32 v250, 7, v222
v_add_u32 v251, s47, v250
v_cmp_gt_u32 vcc, {8 if TW == 4 else 56}, v222
v_cndmask_b32 v251, v233, v251, vcc
s_lshl_b32 s47, s3, 11
v_add_u32 v250, s47, v250
v_cmp_gt_u32 vcc, 16, v222
v_cndmask_b32 v250, v233, v250, vcc""")
    if TW == 6:
        R1 = int(os.environ.get("R1", "768")); NG = int(os.environ.get("NG", "1")); G0 = int(os.environ.get("G0", "3"))
        nl = R1 // 64 // NG
        p(f"""s_lshl_b32 s3, s2, 2
s_add_u32 s3, s3, s20
s_mul_i32 s47, s3, {nl*128}
s_sub_u32 s47, s47, {G0*nl*131072}
v_lshlrev_b32 v251, 7, v222
v_add_u32 v251, s47, v251
v_cmp_gt_u32 vcc, {nl}, v222
v_cndmask_b32 v251, v233, v251, vcc
s_mov_b32 s74, {R1*2048}""")
    def touch():
        if TW == 6: p(f"buffer_load_dword v252, v251, s[72:75], 0 offen\nv_add_u32 v251, {nl*131072}, v251")
        if TW == 4: p("buffer_load_dword v252, v251, s[72:75], 0 offen\nv_add_u32 v251, 1024, v251")
        if TW == 1: p(f"""s_cmp_eq_u32 s28, 2
s_cselect_b32 s72, s68, s72
s_cselect_b32 s73, s69, s73
s_cselect_b32 s74, {1024*2048}, s74
s_cselect_b32 s3, -5, 1
s_mul_i32 s3, s3, 1310720
v_add_u32 v232, s3, v232
buffer_load_dword v233, v232, s[72:75], 0 offen""")
        wtouch()
    TL = int(os.environ.get("TL", "0")); TW = int(os.environ.get("TW", "1"))
    if TL:
        p(f"""s_lshl_b32 s3, s22, 4
s_add_u32 s3, s3, 128
v_add_u32 v234, s3, v222
v_mul_lo_u32 v234, v234, s56
v_cmp_gt_u32 vcc, 16, v222
v_cndmask_b32 v234, v233, v234, vcc
s_lshl_b32 s47, s50, 3
s_add_u32 s3, s3, s47
v_add_u32 v235, s3, v222
v_mul_lo_u32 v235, v235, s57
v_cmp_gt_u32 vcc, 8, v222
v_cndmask_b32 v235, v233, v235, vcc
s_lshl_b32 s59, s56, 7
s_lshl_b32 s30, s57, 7""")
    def wtouch():
        if TL: p("""buffer_load_dword v236, v234, s[8:11], 0 offen
buffer_load_dword v236, v235, s[12:15], 0 offen
v_add_u32 v234, s59, v234
v_add_u32 v235, s30, v235""")
    NT = (2 if TL else 0) + (TW in (1, 4, 6))
    p(f"""s_lshl_b32 s47, s51, 13
v_add_u32 v{AX}, s47, v223""")
    if XRM: p(f"""v_and_b32 v224, 15, v222
v_lshrrev_b32 v225, 4, v222
v_lshrrev_b32 v226, 2, v224
v_xor_b32 v225, v225, v226
v_lshlrev_b32 v224, 6, v224
v_lshl_add_u32 v224, v225, 4, v224
v_add_u32 v{AX}, s47, v224""")
    p(f"""v_add_u32 v{AX+1}, {2*STG}, v{AX}
v_lshrrev_b32 v224, 4, v222
v_bfe_u32 v225, v222, 2, 2
v_and_b32 v226, 3, v222
v_lshl_add_u32 v227, v224, 3, v225
v_lshrrev_b32 v228, 1, v225
v_and_b32 v229, 1, v224
v_lshl_or_b32 v228, v229, 1, v228
v_lshlrev_b32 v230, 7, v227
v_lshl_add_u32 v230, v226, 3, v230
s_lshl_b32 s47, s50, 12
v_add_u32 v230, s47, v230""")
    for t in range(4):
        p(f"""v_xor_b32 v231, {t}, v228
v_lshl_add_u32 v{AP+t}, v231, 5, v230
v_add_u32 v{AP+4+t}, {2*STG}, v{AP+t}""")
    p(f"""v_xor_b32 v229, s50, v229
v_lshlrev_b32 v230, 6, v227
v_lshl_add_u32 v230, v226, 3, v230
v_lshl_add_u32 v230, v229, 5, v230
v_add_u32 v{AS}, 32768, v230
v_add_u32 v{AS+1}, {32768+2*STG}, v230""")
    pair_info("s50", "0", "s60", "s61")
    pair_info("s50", "1", "s60", "s62")
    single_info("0", "s63", "s64")
    single_info("1", "s63", "s65")
    QS = (32 ** -0.5) * LOG2E
    p(f"""s_mov_b32 s70, {hx(-LOG2E)}
s_mov_b32 s71, {hx(-LOG2E)}
s_mov_b32 s78, 1.0
s_mov_b32 s79, 1.0
s_lshl_b32 s58, s22, 4
s_lshl_b32 s47, s51, 3
s_add_u32 s58, s58, s47
s_lshl_b32 s47, s50, 3
v_add_u32 v224, s47, v223
s_lshl_b32 s47, s51, 14
v_add_u32 v225, s47, v224
s_lshl_b32 s48, s50, 12
s_add_u32 s47, s47, s48
v_add_u32 v221, s47, v223""")
    CX = int(os.environ.get("CX", "1"))
    zs = [f"v_mov_b32 v{r}, 0" for r in range(200)] + [f"v_accvgpr_write_b32 a{r}, 0" for r in range(120)]
    ZD = int(os.environ.get("ZD", "17"))
    dq = [(s, idx) for s in (1, 2) for idx in DORD]
    if PEEL:
        zs = []; dq = [(s, idx) for s in range(1 if D1 else 2, PREI) for idx in DORD]
    for k, z in enumerate(zs):
        if k % ZD == 0 and dq:
            s_, idx = dq.pop(0); dma(s_, idx)
            if idx == DORD[-1]: adv()
        p(z)
    for s_, idx in dq:
        dma(s_, idx)
        if idx == DORD[-1]: adv()
    if not PEEL:
        for _ in range(TL): wtouch()
        if TW == 1: p("buffer_load_dword v233, v232, s[72:75], 0 offen")
        if TW == 6: touch()
        if TW in (3, 4): p("buffer_load_dword v252, v250, s[92:95], 0 offen")
        if TW == 3: p("buffer_load_dword v252, v251, s[72:75], 0 offen")
    def rdx(slot, buf, i):
        p(f"ds_read_b128 {xf(buf, i)}, v{AX+(slot>>1)} offset:{(slot&1)*STG + i*1024}")
    def rdw(slot, j):
        t, side = j >> 1, j & 1
        b = wf(j)
        if t < 4:
            off = (slot & 1) * STG + 16384 + side * 8192; a = AP + 4 * (slot >> 1) + t; d = 512
        else:
            off = (slot & 1) * STG + side * 2048; a = AS + (slot >> 1); d = 256
        p(f"ds_read_b64_tr_b16 a[{b}:{b+1}], v{a} offset:{off}")
        p(f"ds_read_b64_tr_b16 a[{b+2}:{b+3}], v{a} offset:{off+d}")
    stamp(p, 5 if PRO else 1)
    p(f"s_waitcnt vmcnt({9 * (PREI - 1) if PEEL else 18 + (TW in (1, 4, 6)) + 2 * (TW == 3) + 2 * TL})")
    p("s_barrier")
    stamp(p, 6 if PRO else 2)
    for j in range(3): rdw(0, j)
    for i in range(8): rdx(0, 0, i)
    def stage(slot, do_dma, vm, last=False):
        buf = slot & 1
        nslot = (slot + 1) & 3
        if not last:
            p(f"s_waitcnt vmcnt({vm})")
            p("s_barrier")
        dq = list(DORD) if do_dma else []
        for j in range(10):
            for i in range(8):
                b = wf(j)
                p(f"v_mfma_f32_16x16x32_bf16 {acc(i,j)}, a[{b}:{b+3}], {xf(buf,i)}, {acc(i,j)}")
                if i == 0:
                    if j + 3 < 10: rdw(slot, j + 3)
                    elif not last: rdw(nslot, j + 3 - 10)
                if i == 4 and 1 <= j <= 8 and not last: rdx(nslot, buf ^ 1, j - 1)
                if i in (2, 6) and dq: dma((slot + 3) & 3, dq.pop(0))
                if DV and (j * 8 + i) % 10 < 7: p(f"v_dot2c_f32_bf16 v{234 + (j*8+i) % 12}, v{(j*8+i+40) % 200}, v{(j*8+i+41) % 200}")
        if do_dma: adv()
    p("s_mov_b32 s28, 7")
    if PEEL:
        dq = [(s_, idx) for s_ in range(PREI, 4) for idx in DORD]
        after = 9 * (PREI - 2); xs = list(range(8)); nper = -(-8 // (10 - MB))
        for j in range(10):
            if j == MB:
                p(f"s_waitcnt vmcnt({after})")
                p("s_barrier")
            for i in range(8):
                b = wf(j)
                p(f"v_mfma_f32_16x16x32_bf16 {acc(i,j)}, a[{b}:{b+3}], {xf(0,i)}, 0")
                if i == 0: rdw(0 if j + 3 < 10 else 1, (j + 3) % 10)
                if j >= MB and xs and i in (1, 4, 5, 7)[:nper] if nper > 2 else (j >= MB and xs and i in (4, 7)[:nper]): rdx(1, 1, xs.pop(0))
                if i in (2, 6) and dq:
                    s_, idx = dq.pop(0); dma(s_, idx); after += 1
                    if idx == DORD[-1]: adv()
        assert not dq and not xs and MB <= 7
        for _ in range(TL): wtouch()
        if TW == 1: p("buffer_load_dword v233, v232, s[72:75], 0 offen")
        if TW == 6: touch()
        if TW in (3, 4): p("buffer_load_dword v252, v250, s[92:95], 0 offen")
        if TW == 3: p("buffer_load_dword v252, v251, s[72:75], 0 offen")
    p(f"{n}_loop:")
    for s in range(4): stage((s + PEEL) & 3, True, 9 + NT if s < 2 else 9)
    touch()
    p(f"""s_sub_u32 s28, s28, 1
s_cmp_lg_u32 s28, 0
s_cbranch_scc1 {n}_loop""")
    if not PRO: stamp(p, 3)
    OVL = int(os.environ.get("OVL", "1"))
    if not PEEL: stage(0, True, 9 + NT)
    if not OVL:
        stage(1, False, 9 + NT)
        stage(2, False, 0)
        stage(3, False, 0, last=True)
    if not PRO: stamp(p, 4)
    def flagz(p):
        p(f"""v_lshrrev_b32 v226, 2, v223
v_mov_b32 v227, 0
s_lshl_b32 s3, s2, 10
s_lshl_b32 s47, s20, 8
s_add_u32 s3, s3, s47
s_add_u32 s3, s3, {FLAG_OFF}
buffer_store_dword v227, v226, s[16:19], s3 offen""")
    if not OVL: flagz(p)
    if not OVL: p("s_nop 7")
    T0 = 226
    class Sink:
        def __init__(self): self.l = []; self.req = 0; self.base = 0
        def __call__(self, text):
            for x in text.split("\n"):
                if x.strip(): self.l.append((x.strip(), self.req))
        def row(self, i): self.req = max(self.req, self.base + 4 * (i + 1) + 2)
    def getacc(p, i, j, tmp):
        if i < 5: return (i * 10 + j) * 4
        b = ((i - 5) * 10 + j) * 4
        for e in range(4): p(f"v_accvgpr_read_b32 v{tmp+e}, a{b+e}")
        return tmp
    def qkv_group(p, tiles, blkG, blkU, boff, vo):
        for side, blk in ((0, blkG), (1, blkU)):
            p(f"""s_add_u32 s47, {blk}, {boff}
s_cmp_lt_u32 s47, 32
s_cselect_b32 s76, {hx(QS)}, 1.0
s_mov_b32 s77, s76
s_lshl_b32 s74, s47, 17
s_lshl_b32 s47, s58, 10
s_add_u32 s74, s74, s47
s_add_u32 s74, s74, {QKV_OFF}""")
            for i in range(8):
                if isinstance(p, Sink): p.row(i)
                o = T0 + 8 + (i & 1) * 4
                for k, t in enumerate(tiles):
                    r = getacc(p, i, 2 * t + side, T0 + 4 * k)
                    p(f"v_pk_mul_f32 v[{r}:{r+1}], v[{r}:{r+1}], s[76:77]")
                    p(f"v_pk_mul_f32 v[{r+2}:{r+3}], v[{r+2}:{r+3}], s[76:77]")
                    p(f"v_cvt_pk_bf16_f32 v{o+2*k}, v{r}, v{r+1}")
                    p(f"v_cvt_pk_bf16_f32 v{o+2*k+1}, v{r+2}, v{r+3}")
                if len(tiles) == 2: p(f"buffer_store_dwordx4 v[{o}:{o+3}], v{vo}, s[16:19], s74 offen offset:{(i&3)*1024}{STM}")
                elif CX: p(f"ds_write_b64 v225, v[{o}:{o+1}] offset:{side*8192 + i*1024}")
                else: p(f"buffer_store_dwordx2 v[{o}:{o+1}], v{vo}, s[16:19], s74 offen offset:{(i&3)*1024}{STM}")
                if i == 3: p("s_add_u32 s74, s74, 4096")
    def gu_group(p, tiles, blk, boff, vo):
        p(f"""s_add_u32 s47, {blk}, {boff+32}
s_lshl_b32 s74, s47, 10
s_mul_i32 s47, s58, {ACT_T}
s_add_u32 s74, s74, s47
s_add_u32 s74, s74, {ACT_OFF}""")
        for i in range(8):
            if isinstance(p, Sink): p.row(i)
            o = T0 + 16 + (i & 1) * 4
            for k, t in enumerate(tiles):
                g = getacc(p, i, 2 * t, T0)
                u = getacc(p, i, 2 * t + 1, T0 + 4)
                e = T0 + 8 + 4 * (k & 1)
                p(f"v_pk_mul_f32 v[{e}:{e+1}], v[{g}:{g+1}], s[70:71]")
                p(f"v_pk_mul_f32 v[{e+2}:{e+3}], v[{g+2}:{g+3}], s[70:71]")
                for x in range(4): p(f"v_exp_f32 v{e+x}, v{e+x}")
                p(f"v_pk_mul_f32 v[{g}:{g+1}], v[{g}:{g+1}], v[{u}:{u+1}]")
                p(f"v_pk_mul_f32 v[{g+2}:{g+3}], v[{g+2}:{g+3}], v[{u+2}:{u+3}]")
                p(f"v_pk_add_f32 v[{e}:{e+1}], v[{e}:{e+1}], s[78:79]")
                p(f"v_pk_add_f32 v[{e+2}:{e+3}], v[{e+2}:{e+3}], s[78:79]")
                for x in range(4): p(f"v_rcp_f32 v{e+x}, v{e+x}")
                p(f"v_pk_mul_f32 v[{g}:{g+1}], v[{g}:{g+1}], v[{e}:{e+1}]")
                p(f"v_pk_mul_f32 v[{g+2}:{g+3}], v[{g+2}:{g+3}], v[{e+2}:{e+3}]")
                p(f"v_cvt_pk_bf16_f32 v{o+2*k}, v{g}, v{g+1}")
                p(f"v_cvt_pk_bf16_f32 v{o+2*k+1}, v{g+2}, v{g+3}")
            if len(tiles) == 2: p(f"buffer_store_dwordx4 v[{o}:{o+3}], v{vo}, s[16:19], s74 offen{STM}")
            elif CX: p(f"ds_write_b64 v225, v[{o}:{o+1}] offset:{i*1024}")
            else: p(f"buffer_store_dwordx2 v[{o}:{o+1}], v{vo}, s[16:19], s74 offen{STM}")
            if i < 7: p(f"s_add_u32 s74, s74, {ACT_T}")
    B2 = int(os.environ.get("B2", "44")); TC = int(os.environ.get("TC", "8")); SP = int(os.environ.get("SP", "12")); WD = int(os.environ.get("WD", "20"))
    def tail(kind):
        XB = {1: 152, 2: 120, 3: 204}
        def ws(f): f %= 10; return 184 + f * 4 if f < 5 else 236 + (f - 5) * 4
        M = []; frag = []
        bases = []
        for js in ((0, 1, 2, 3), (4, 5, 6, 7), (8, 9)):
            for slot in (1, 2, 3):
                f0 = len(frag); m0 = len(M)
                if slot == 3:
                    bases.append(m0)
                    order = [(i, k) for i in range(8) for k in range(len(js))]
                else: order = [(i, k) for k in range(len(js)) for i in range(8)]
                fu = {}; lu = {}
                for (i, k) in order:
                    fu.setdefault(k, len(M)); lu[k] = len(M)
                    w = ws(f0 + k); x = XB[slot] + 4 * i
                    M.append([f"v_mfma_f32_16x16x32_bf16 {acc(i, js[k])}, a[{w}:{w+3}], a[{x}:{x+3}], {acc(i, js[k])}"])
                for k, j in enumerate(js): frag.append((slot, j, fu[k], lu[k]))
        S = Sink()
        def rd_w(slot, j, b):
            t, side = j >> 1, j & 1
            if t < 4: off = (slot & 1) * STG + 16384 + side * 8192; a = AP + 4 * (slot >> 1) + t; d = 512
            else: off = (slot & 1) * STG + side * 2048; a = AS + (slot >> 1); d = 256
            return [f"ds_read_b64_tr_b16 a[{b}:{b+1}], v{a} offset:{off}", f"ds_read_b64_tr_b16 a[{b+2}:{b+3}], v{a} offset:{off+d}"]
        def rd_x(slot, i): return [f"ds_read_b128 a[{XB[slot]+4*i}:{XB[slot]+4*i+3}], v{AX+(slot>>1)} offset:{(slot&1)*STG + i*1024}"]
        M[B2] += ["s_waitcnt vmcnt(0)", "s_barrier"]
        if TW == 2:
            M[B2 + 14] += ["buffer_load_dword v252, v251, s[72:75], 0 offen"]
            M[B2 + 15] += ["s_mov_b32 s72, s68", "s_mov_b32 s73, s69", f"s_mov_b32 s74, {1024*2048}"]
            M[B2 + 16] += ["buffer_load_dword v252, v250, s[72:75], 0 offen"]
        for i in range(8): M[2 + 2 * i] += rd_x(2, i)
        nxt = B2
        for f, (slot, j, fu, lu) in enumerate(frag):
            if f < 3: continue
            at = max(fu - WD, 0)
            if f >= 10: at = max(at, frag[f - 10][3] + 1)
            if slot == 3 and at <= nxt and f < 12: at = nxt; nxt += 1
            assert at < fu and (slot != 3 or at >= B2)
            M[at] += rd_w(slot, j, ws(f))
            if f == 8:
                M[nxt] += rd_x(3, 0); nxt += 1
        for i in range(1, 8): M[nxt] += rd_x(3, i); nxt += 1
        assert nxt < 64
        flagz(S); S.l = [(x, B2 + 1) for x, _ in S.l]
        for g in range(2):
            S.base = bases[g]; S.row(0); n0 = len(S.l)
            if kind == "gu": gu_group(S, (2 * g, 2 * g + 1), "s61", g, 223)
            else: qkv_group(S, (2 * g, 2 * g + 1), "s61", "s62", g, 223)
            mod = os.environ.get("SA" if g == 0 else "SB", "")
            if mod: S.l[n0:] = [(x + " " + mod if x.startswith("buffer_store") else x, rq) for x, rq in S.l[n0:]]
        mi = 0; credit = 0
        for line, req in S.l:
            while mi < min(req, len(M)):
                p("\n".join(M[mi])); mi += 1; credit = 0
            if credit >= SP and mi < len(M):
                p("\n".join(M[mi])); mi += 1; credit = 0
            p(line)
            credit += TC if line.startswith(("v_exp", "v_rcp")) else (4 if line.startswith(("v_", "buffer")) else 1)
        while mi < len(M): p("\n".join(M[mi])); mi += 1
        p("s_nop 7")
    def creg(side, ii): return (ii * 10 + 8 + side) * 4
    def c_part():
        p(f"""s_nop 3
s_cmp_lg_u32 s63, 0
s_cbranch_scc1 {n}_gu_c""")
        qkv_group(p, (4,), "s64", "s65", 0, 224)
        p(f"s_branch {n}_c2")
        p(f"{n}_gu_c:")
        gu_group(p, (4,), "s64", 0, 224)
        p(f"{n}_c2:")
        if CX:
            p("s_waitcnt lgkmcnt(0)")
            p("s_barrier")
            for side in range(2):
                for ii in range(4): p(f"ds_read_b128 v[{creg(side,ii)}:{creg(side,ii)+3}], v221 offset:{side*8192 + ii*1024}")
    def c_fin():
        if not CX: return
        p(f"""s_cmp_lg_u32 s63, 0
s_cbranch_scc1 {n}_gu_f""")
        for side, blk in ((0, "s64"), (1, "s65")):
            p(f"""s_lshl_b32 s74, {blk}, 17
s_lshl_b32 s47, s58, 10
s_add_u32 s74, s74, s47
s_lshl_b32 s47, s50, 12
s_add_u32 s74, s74, s47
s_add_u32 s74, s74, {QKV_OFF}
s_waitcnt lgkmcnt(0)""")
            for ii in range(4): p(f"buffer_store_dwordx4 v[{creg(side,ii)}:{creg(side,ii)+3}], v223, s[16:19], s74 offen offset:{ii*1024}{STM}")
        p(f"""s_branch {n}_fin
{n}_gu_f:
s_add_u32 s47, s64, 32
s_lshl_b32 s74, s47, 10
s_lshl_b32 s47, s50, 2
s_add_u32 s47, s47, s58
s_mul_i32 s47, s47, {ACT_T}
s_add_u32 s74, s74, s47
s_add_u32 s74, s74, {ACT_OFF}
s_waitcnt lgkmcnt(0)""")
        for ii in range(4):
            p(f"buffer_store_dwordx4 v[{creg(0,ii)}:{creg(0,ii)+3}], v223, s[16:19], s74 offen{STM}")
            if ii < 3: p(f"s_add_u32 s74, s74, {ACT_T}")
    if OVL:
        p(f"s_waitcnt vmcnt({9 + NT}) lgkmcnt(0)")
        p("s_barrier")
    elif CX: c_part()
    p(f"""s_cmp_lg_u32 s60, 0
s_cbranch_scc1 {n}_gu_ab""")
    if OVL: tail("qkv")
    else:
        qkv_group(p, (0, 1), "s61", "s62", 0, 223)
        qkv_group(p, (2, 3), "s61", "s62", 1, 223)
    p(f"s_branch {n}_c")
    p(f"{n}_gu_ab:")
    if OVL: tail("gu")
    else:
        gu_group(p, (0, 1), "s61", 0, 223)
        gu_group(p, (2, 3), "s61", 1, 223)
    p(f"{n}_c:")
    if OVL or not CX: c_part()
    c_fin()
    p(f"{n}_fin:")
    if not PRO: stamp(p, 5)
    if DBG: p("s_waitcnt vmcnt(0)")
    if not PRO: stamp(p, 6)
    stamp_out(p, 7, 0, "s20", 1)
    p(f"{n}_end:")
    p("s_endpgm")
    return p.finalize() + descriptor(n, 512, 256), f"; @launch kernel={n} grid=(256,1,1) block=(256,1,1) lds={4*STG}"

def build(parts, path):
    hdr = open(f"cdna_kernels/{NAME}.s.ref").read().split("; Override launch")[0]
    txt = hdr + "\n".join(l for _, l in parts) + "\n" + '.amdgcn_target "amdgcn-amd-amdhsa--gfx950"\n' + "".join(c for c, _ in parts)
    open(path, "w").write(txt)
    print("wrote", path, len(txt))

if __name__ == "__main__":
    parts = [gen_ln2() if os.environ.get("LN2", "1") == "1" else gen_ln(), gen_g1()]
    try:
        import gen2
        parts += gen2.parts()
    except ImportError:
        pass
    build(parts, sys.argv[1] if len(sys.argv) > 1 else f"cdna_kernels/{NAME}.s")
```
